```python
import torch

def _softmax(x, axis=-1):
    return torch.softmax(x, dim=axis)

def _gelu(x):
    return torch.nn.functional.gelu(x, approximate='tanh')

def _silu(x):
    return torch.nn.functional.silu(x)

def _sigmoid(x):
    return torch.sigmoid(x)

def _layernorm(x, axis=-1, eps=1e-05):
    m = x.mean(dim=axis, keepdim=True)
    v = x.var(dim=axis, keepdim=True, unbiased=False)
    return (x - m) / torch.sqrt(v + eps)

def _scatter_add(tgt, idx, src, axis=0):
    return tgt.clone().index_add_(axis, idx, src)

def _segment_sum(src, seg, n):
    out = torch.zeros((n,) + src.shape[1:], dtype=src.dtype)
    return out.index_add_(0, seg, src)

def _pad(x, pw):
    flat = tuple((v for pair in reversed(pw) for v in pair))
    return torch.nn.functional.pad(x, flat)
kernel_name = 'standalone__conformer_conv_module__speech'

def setup_inputs():

    _w = lambda a: (lambda t: t.to(torch.bfloat16) if t.is_floating_point() else t)(torch.as_tensor(a))
    B, T, D, K = (2, 16000, 256, 15)
    return {'x': _w((lambda *s: torch.randn(*s, dtype=torch.bfloat16) * 0.2)(B, T, D)), 'w_pw1': _w((lambda *s: torch.randn(*s, dtype=torch.bfloat16) * 0.2)(D, 2 * D)), 'dw': _w((lambda *s: torch.randn(*s, dtype=torch.bfloat16) * 0.2)(K, D)), 'w_pw2': _w((lambda *s: torch.randn(*s, dtype=torch.bfloat16) * 0.05)(D, D))}

def reference(x, w_pw1, dw, w_pw2):
    B, T, D = x.shape
    K = dw.shape[0]
    h = x @ w_pw1
    a, b = (h[..., :D].clone(), h[..., D:].clone())
    h = a * _sigmoid(b)
    pad = K // 2
    hp = _pad(h, ((0, 0), (pad, pad), (0, 0)))
    out = torch.zeros_like(h)
    for i in range(K):
        out = out + hp[:, i:i + T, :] * dw[i][None, None, :]
    return _silu(out) @ w_pw2
```

```python
import re

def R(kind, n, cnt=1):
    return [(kind, n + i) for i in range(cnt)]

def rt(kind, n, cnt=1):
    return f'{kind}{n}' if cnt == 1 else f'{kind}[{n}:{n+cnt-1}]'

class Op:
    def __init__(s, kind, n, cnt=1):
        s.kind, s.n, s.cnt = kind, n, cnt
    def __str__(s): return rt(s.kind, s.n, s.cnt)
    def regs(s): return R(s.kind, s.n, s.cnt)
    def __getitem__(s, i):
        if isinstance(i, slice):
            a = i.start or 0; b = s.cnt if i.stop is None else i.stop
            return Op(s.kind, s.n + a, b - a)
        return Op(s.kind, s.n + i, 1)

def V(n, c=1): return Op('v', n, c)
def A(n, c=1): return Op('a', n, c)
def S(n, c=1): return Op('s', n, c)
M0 = Op('m', 0)
M0.__class__ = type('M0op', (Op,), {'__str__': lambda s: 'm0'})

def lit(x):
    if isinstance(x, Op): return str(x)
    if isinstance(x, str): return x
    if isinstance(x, int):
        if -16 <= x <= 64: return str(x)
        return hex(x & 0xffffffff)
    raise ValueError(x)

def regs_of(x):
    return x.regs() if isinstance(x, Op) else []

class I:
    def __init__(s, kind, text, rd=(), wr=(), **kw):
        s.kind, s.text = kind, text
        s.rd, s.wr = list(rd), list(wr)
        s.tok = kw.get('tok')
        s.needs = list(kw.get('needs', ()))
        s.srcc = kw.get('srcc', [])
        s.passes = kw.get('passes', 0)
        s.wide = kw.get('wide', [])
        s.note = kw.get('note', '')
        s.drain_lgkm = kw.get('drain_lgkm', False)
    def __repr__(s): return s.text

class Tok:
    n = 0
    def __init__(s, name=''):
        Tok.n += 1; s.name = name or f't{Tok.n}'
    def __repr__(s): return s.name

TRANS = {'v_exp_f32', 'v_rcp_f32', 'v_log_f32', 'v_rsq_f32'}

def valu(op, dst, *src):
    rd = [r for x in src for r in regs_of(x)]
    kind = 'trans' if op in TRANS else 'valu'
    return I(kind, f'{op} {dst}, ' + ', '.join(lit(x) for x in src), rd=rd, wr=dst.regs())

def salu(op, dst, *src):
    rd = [r for x in src for r in regs_of(x)]
    wr = dst.regs() if dst is not None else []
    if op in ('s_addc_u32', 's_cselect_b32', 's_subb_u32'): rd.append(('scc', 0))
    if op in ('s_add_u32', 's_addc_u32', 's_sub_u32', 's_and_b32', 's_lshl_b32', 's_lshr_b32', 's_or_b32') or op.startswith('s_cmp'):
        wr.append(('scc', 0))
    ops = ([str(dst)] if dst is not None else []) + [lit(x) for x in src]
    return I('salu', f'{op} ' + ', '.join(ops), rd=rd, wr=wr)

MF = {32: ('v_mfma_f32_32x32x16_bf16', 8), 16: ('v_mfma_f32_16x16x32_bf16', 4), 4: ('v_mfma_f32_4x4x4_16b_bf16', 2)}
def mfma(sz, d, a, b, c):
    op, p = MF[sz]
    rd = a.regs() + b.regs() + regs_of(c)
    return I('mfma', f'{op} {d}, {a}, {b}, {lit(c)}', rd=rd, wr=d.regs(), srcc=regs_of(c), passes=p)

def off(o):
    return f' offset:{o}' if o else ''

def ds_read(op, dst, addr, o=0, needs=(), tok=None):
    assert 0 <= o < 65536, o
    return I('dsr', f'{op} {dst}, {addr}{off(o)}', rd=addr.regs(), wr=dst.regs(), needs=needs, tok=tok or Tok())

def ds_write(op, addr, src, o=0, needs=(), tok=None):
    assert 0 <= o < 65536, o
    return I('dsw', f'{op} {addr}, {src}{off(o)}', rd=addr.regs() + src.regs(), needs=needs, tok=tok or Tok(),
             wide=src.regs() if src.cnt > 2 else [])

def dma(voff, srd, soff, o=0, flags='', needs=(), tok=None):
    assert 0 <= o < 4096
    return I('dma', f'buffer_load_dwordx4 {voff}, {srd}, {lit(soff)} offen{off(o)}{flags} lds',
             rd=voff.regs() + srd.regs() + regs_of(soff) + [('m', 0)], needs=needs, tok=tok or Tok())

def vload(op, dst, voff, srd, soff, o=0, flags='', tok=None):
    return I('vld', f'{op} {dst}, {voff}, {srd}, {lit(soff)} offen{off(o)}{flags}',
             rd=voff.regs() + srd.regs() + regs_of(soff), wr=dst.regs(), tok=tok or Tok())

def vstore(op, src, voff, srd, soff, o=0, flags='', tok=None):
    return I('vst', f'{op} {src}, {voff}, {srd}, {lit(soff)} offen{off(o)}{flags}',
             rd=src.regs() + voff.regs() + srd.regs() + regs_of(soff), tok=tok or Tok(),
             wide=src.regs() if src.cnt > 2 else [])

def barrier(needs=(), drain_lgkm=False, note=''):
    return I('bar', 's_barrier', needs=needs, drain_lgkm=drain_lgkm, note=note)
def waitfor(needs):
    return I('mark', '', needs=needs)
def raw(text, kind='misc', rd=(), wr=()):
    return I(kind, text, rd=rd, wr=wr)
def prio(n): return I('misc', f's_setprio {n}')
def comment(t): return I('mark', f'; {t}')

def add_waits(ins):
    out = []
    lg, vm = [], []
    for i in ins:
        touched = set(i.rd) | set(i.wr)
        need_l = need_v = -1
        for k, o in enumerate(lg):
            if (set(o.wr) & touched) or (o.tok in i.needs): need_l = k
        for k, o in enumerate(vm):
            if (set(o.wr) & touched) or (o.tok in i.needs): need_v = k
        if i.drain_lgkm and lg: need_l = len(lg) - 1
        if i.kind in ('dsr',):
            need_l2 = -1
            for k, o in enumerate(lg):
                if (set(o.wr) & set(i.rd)) or (o.tok in i.needs): need_l2 = k
            need_l = need_l2
        parts = []
        if need_v >= 0:
            n = min(len(vm) - 1 - need_v, 63)
            parts.append(f'vmcnt({n})'); vm = vm[len(vm) - n:] if n else []
        if need_l >= 0:
            n = min(len(lg) - 1 - need_l, 15)
            parts.append(f'lgkmcnt({n})'); lg = lg[len(lg) - n:] if n else []
        if parts: out.append(I('wait', 's_waitcnt ' + ' '.join(parts)))
        out.append(i)
        if i.kind in ('dsr', 'dsw'): lg.append(i)
        if i.kind in ('dma', 'vld', 'vst'): vm.append(i)
        if i.kind == 'smem': lg.append(i)
    return out

def add_nops(ins):
    out = []
    D_RW = {2: 5, 4: 8, 8: 12}
    C_OVL = {2: 4, 4: 6, 8: 10}
    C_WAR = {2: 1, 4: 3, 8: 7}
    for i in ins:
        if i.kind == 'mark':
            out.append(i); continue
        need = 0
        dist = 0
        rd, wr = set(i.rd), set(i.wr)
        isvalu = i.kind in ('valu', 'trans')
        ismem = i.kind in ('dsr', 'dsw', 'dma', 'vld', 'vst')
        for p in reversed(out):
            if p.kind == 'mark': continue
            if dist >= 20: break
            pw = set(p.wr)
            req = 0
            if p.kind in ('valu', 'trans'):
                if i.kind == 'mfma' and (pw & rd): req = max(req, 2)
                if p.kind == 'trans' and i.kind == 'valu' and (pw & rd): req = max(req, 1)
                if i.text.startswith('v_readfirstlane') and (pw & rd): req = max(req, 1)
                sw = {r for r in pw if r[0] == 's'}
                if sw & rd:
                    if ismem: req = max(req, 5)
                    if isvalu: req = max(req, 2)
            if p.kind == 'salu' and ('m', 0) in pw and i.kind == 'dma': req = max(req, 1)
            if p.kind == 'mfma':
                if i.kind == 'mfma':
                    c = set(i.srcc)
                    ab = rd - c if not c else set(i.rd[:len(i.rd) - len(i.srcc)])
                    if pw & ab: req = max(req, D_RW[p.passes])
                    if pw & c:
                        if p.wr == i.srcc and p.passes == i.passes: req = max(req, 2 if p.passes == 2 else 0)
                        else: req = max(req, C_OVL[p.passes])
                    elif pw & wr:
                        req = max(req, C_OVL[p.passes])
                elif (isvalu or ismem) and (pw & (rd | wr)):
                    req = max(req, D_RW[p.passes])
                if (isvalu or ismem) and (set(p.srcc) & wr): req = max(req, C_WAR[p.passes])
            if p.wide and (isvalu or i.kind in ('mfma', 'dsr', 'vld')) and (set(p.wide) & wr): req = max(req, 2)
            need = max(need, req - dist)
            dist += 1
            if p.text.startswith('s_nop'): dist += int(p.text.split()[1])
        while need > 0:
            n = min(need, 8)
            out.append(I('nop', f's_nop {n-1}')); need -= n
        out.append(i)
    return out

def interleave(main, fillers):
    by = {}
    for pos, g in fillers:
        pos = min(pos, len(main) - 1)
        by.setdefault(pos, []).extend(g)
    out = list(by.get(-1, []))
    for k, m in enumerate(main):
        out.append(m); out.extend(by.get(k, []))
    return out

def sprinkle(main, side, start=0, pred=lambda i: i.kind == 'trans', per=1):
    side = list(side); out = []
    for k, m in enumerate(main):
        out.append(m)
        if k >= start and pred(m):
            for _ in range(per):
                if side:
                    g = side.pop(0); out.extend(g if isinstance(g, list) else [g])
    for g in side: out.extend(g if isinstance(g, list) else [g])
    return out

def finalize(ins):
    return add_nops(add_waits(ins))

def text(ins):
    return ''.join(('    ' + i.text + (f'   ; {i.note}' if i.note else '') + '\n') for i in ins if i.text)
```

```python
import sys
from ir import *

K = 'standalone__conformer_conv_module__speech_kernel'
X2, WAREA, WSTR, R2STR = 41600, 74880, 11120, 10400
DWOFF, HT, ST01 = 8320, 32, 5696
NTS = 16

sX, sW1, sW2, sDW, sOUT, sWS = S(4, 4), S(8, 4), S(12, 4), S(16, 4), S(20, 4), S(24, 4)
sw, sBASE, sSO, sROW, sC1, sC2, sR2, sT0, sT1, sXS, sXL, sU, sSTG = [S(28 + i) for i in range(13)]
sTS = 44

accH = V(0, 16)
accA = [V(16, 16), V(48, 16)]
accB = [V(32, 16), V(64, 16)]
FR = [V(80 + 4 * i, 4) for i in range(4)]
XHF, W16 = V(96, 4), [V(100, 4), V(104, 4)]
TZ = [V(108, 10), V(96, 10)]
vXH, vWT16, vW1V, vWT32, vTG0, vHWH0, vP0, vP1 = [V(108 + i) for i in range(8)]
vTG, vHWH = V(95), V(94)
vXA, vHW, vHR, vSW, vW2V, vW2T, vR0, vR1, vR2, vOW = [V(118 + i) for i in range(10)]
vOR, vOV = V(106), V(107)
CB = [[V(16, 4), V(20, 4), V(24, 4)], [V(28, 4), V(40, 4), V(44, 4)]]
TMP = V(32, 8)

def W1F(s, ab): return A(8 * s + 4 * ab, 4)

class Opt(dict):
    __getattr__ = dict.get

DEF = Opt(x2mode='B_start', w2i0=12, w2r=2.0, ts=False, prioV=2, prioA1=1, stflags=' sc0 sc1 nt', xflags=' nt')

class Gen:
    def __init__(g, **kw):
        g.o = Opt(DEF); g.o.update(kw)
        g.nts = {}

    def ts(g, role, name):
        if not g.o.ts: return []
        k = g.nts.setdefault(role, [])
        k.append(name); n = len(k)
        assert n <= NTS - 3
        t = Tok()
        return [I('smem', f's_memtime {S(sTS + 2 * n, 2)}', wr=S(sTS + 2 * n, 2).regs(), tok=t), waitfor([t])]

    def fields(g, names, tmp0):
        spec = dict(l=(0, 6), b01=(0, 2), b0=(0, 1), b1=(1, 1), b2=(2, 1), b3=(3, 1), b4=(4, 1), b5=(5, 1), b23=(2, 2),
                    b234=(2, 3), b25=(2, 4), b03=(0, 4), b04=(0, 5), b02=(0, 3), b45=(4, 2), b35=(3, 3), b34=(3, 2))
        ins, m = [], {}
        for i, n in enumerate(names):
            r = V(tmp0 + i); sh, nb = spec[n]
            ins.append(valu('v_bfe_u32', r, V(0), sh, nb)); m[n] = r
        return ins, m

    def lin(g, dst, terms, base):
        ins = []; cur = None
        for r, mul in terms:
            p2 = mul & (mul - 1) == 0
            if cur is None:
                if p2: ins.append(valu('v_lshlrev_b32', dst, mul.bit_length() - 1, r))
                else: ins.append(valu('v_mul_u32_u24', dst, mul, r))
                cur = dst
            elif p2: ins.append(valu('v_lshl_add_u32', dst, r, mul.bit_length() - 1, dst))
            else:
                ins.append(salu('s_mov_b32', sT1, mul)); ins.append(valu('v_mad_u32_u24', dst, r, sT1, dst))
        for b in (base if isinstance(base, list) else [base]):
            if isinstance(b, Op) or b: ins.append(valu('v_add_u32', dst, b, dst))
        return ins

    def m0set(g, base, imm):
        if base is None: return salu('s_mov_b32', M0, imm)
        return salu('s_add_u32', M0, base, imm) if imm else salu('s_mov_b32', M0, base)

    def dmaop(g, voff, srd, sbase, simm, lbase, limm, flags='', needs=()):
        ins = []
        if sbase is None and 0 <= simm <= 64: so = simm
        elif sbase is not None and simm == 0: so = sbase
        else:
            ins.append(salu('s_mov_b32', sSO, simm) if sbase is None else salu('s_add_u32', sSO, sbase, simm)); so = sSO
        ins.insert(0, g.m0set(lbase, limm))
        d = dma(voff, srd, so, flags=flags, needs=needs); ins.append(d)
        return ins, d.tok

    def common(g):
        o = []
        o.append(salu('s_cmp_ge_u32', None, S(2), 250))
        o.append(raw('s_cbranch_scc1 L_END'))
        loads = [(sX, 0), (sW1, 8), (sW2, 24), (sDW, 16), (sOUT, 32)] + ([(sWS, 48)] if g.o.ts else [])
        for r, a in loads:
            o.append(I('smem', f's_load_dwordx2 {r[0:2]}, s[0:1], {a}', wr=r[0:2].regs(), tok=Tok()))
        if g.o.ts:
            o.append(I('smem', f's_memrealtime {S(90, 2)}', wr=S(90, 2).regs(), tok=Tok()))
            o.append(I('smem', f's_memtime {S(sTS, 2)}', wr=S(sTS, 2).regs(), tok=Tok()))
        o.append(valu('v_lshrrev_b32', V(1), 6, V(0)))
        o.append(salu('s_cmp_ge_u32', None, S(2), 125))
        o.append(I('valu', f'v_readfirstlane_b32 {sw}, v1', rd=[('v', 1)], wr=sw.regs()))
        o.append(salu('s_cselect_b32', sT0, 125, 0))
        o.append(salu('s_cselect_b32', sT1, 8192000, 0))
        o.append(salu('s_sub_u32', sROW, S(2), sT0))
        o.append(salu('s_lshl_b32', sROW, sROW, 16))
        f, F = g.fields(['b234', 'b5', 'b01', 'b25'], 2)
        g.F0 = F
        o += f
        o += g.lin(V(6), [(F['b234'], 512), (F['b5'], 64), (F['b01'], 16)], 0)
        g.vXV = V(6)
        for r, n in ((sX, 8192000), (sW1, 262144), (sW2, 131072), (sDW, 7680), (sOUT, 65536)):
            o.append(salu('s_mov_b32', r[2], n)); o.append(salu('s_mov_b32', r[3], 0x20000))
        if g.o.ts:
            o.append(salu('s_mov_b32', sWS[2], 1 << 20)); o.append(salu('s_mov_b32', sWS[3], 0x20000))
        o.append(salu('s_and_b32', sU, sw, 3))
        o.append(salu('s_mul_i32', sBASE, sw, WSTR))
        o.append(salu('s_add_u32', sBASE, sBASE, WAREA))
        o.append(salu('s_mul_i32', sR2, sU, R2STR))
        o.append(salu('s_lshl_b32', sXS, sU, 13))
        o.append(salu('s_add_u32', sXS, sXS, sROW))
        o.append(salu('s_lshr_b32', sT0, sU, 1))
        o.append(salu('s_mul_i32', sXL, sT0, 12 * 1040))
        o.append(salu('s_mul_i32', sT0, sU, 2 * 1040))
        o.append(salu('s_add_u32', sXL, sXL, sT0))
        o.append(I('mark', '', needs=[], drain_lgkm=True))
        o.append(salu('s_add_u32', sX[0], sX[0], sT1))
        o.append(salu('s_addc_u32', sX[1], sX[1], 0))
        o.append(salu('s_add_u32', sT1, sT1, sROW))
        o.append(salu('s_add_u32', sOUT[0], sOUT[0], sT1))
        o.append(salu('s_addc_u32', sOUT[1], sOUT[1], 0))
        o.append(salu('s_cmp_ge_u32', None, sw, 4))
        o.append(raw('s_cbranch_scc1 L_B'))
        return o

    def w1ring(g, s, ab, needs=()):
        ins, t = g.dmaop(vW1V, sW1, None, s * 16384 + ab * 512, sBASE, ((2 * s + ab) % 8) * 1040, needs=needs)
        g.tW[(s, ab)] = t
        return ins

    def w1v(g):
        F = g.F0
        return [salu('s_lshl_b32', sT0, sw, 6)] + g.lin(vW1V, [(F['b25'], 1024), (F['b01'], 16)], sT0)

    def prefill(g):
        o = []
        for s, ab in ((0, 0), (1, 0), (0, 1), (1, 1), (2, 0), (3, 0), (2, 1), (3, 1)): o += g.w1ring(s, ab)
        return o

    def dwload(g):
        F = g.F0
        o = [salu('s_lshl_b32', sT0, sw, 6)] + g.lin(V(7), [(F['b25'], 512), (F['b01'], 16)], sT0)
        ins, g.tDW = g.dmaop(V(7), sDW, None, 0, sBASE, DWOFF + 256)
        return o + ins

    def x2load(g, mode):
        o = []; toks = []
        if mode == 'full':
            for q in range(4):
                for gr in range(2):
                    ins, t = g.dmaop(g.vXV2, sX, sXS, 72 * 512 + 4096 * gr + 128 * q, sXL, X2 + (4 * q + gr) * 1040, flags=g.o.xflags)
                    o.append(ins); toks.append(t)
        else:
            jj = 0 if mode == 'T2' else 1
            pre = [salu('s_lshl_b32', sT0, sU, 12), salu('s_add_u32', sT0, sT0, sROW), salu('s_mul_i32', sT1, sU, 1040)]
            for q in range(4):
                ins, t = g.dmaop(g.vXV2, sX, sT0, (72 + 32 * jj) * 512 + 128 * q, sT1, X2 + (16 * jj + 4 * q) * 1040, flags=g.o.xflags)
                o.append(pre + ins); pre = []; toks.append(t)
        return o, toks

    def addrs(g, role):
        F0 = g.F0
        f, F = g.fields(['b0', 'b1', 'b2', 'b3', 'b4', 'b23', 'b03', 'b04', 'b02', 'b45', 'b35', 'b34', 'l'], 8)
        F.update(F0)
        o = list(f)
        o += g.lin(vXA, [(F['b2'], 2080), (F['b4'], 1040), (F['b3'], 256), (F['b01'], 64), (F['b5'], 16)], 0)
        o += g.lin(vXH, [(F['b3'], 1040), (F['b02'], 64), (F['b4'], 32), (F['b5'], 16)], 0)
        o += g.lin(vR0, [(F['b5'], 512), (F['b23'], 64), (F['b01'], 8)], 0)
        o += g.lin(vWT16, [(F['b4'], 2080)], [vR0, sBASE])
        o += [valu('v_lshl_add_u32', vR0, F['b4'], 5, vR0)]
        o += [valu('v_add_u32', vWT32, sBASE, vR0)]
        c, t = V(24), V(25)
        o += [valu('v_bcnt_u32_b32', t, F['b234'], 0), valu('v_and_b32', t, 1, t)]
        o += g.lin(c, [(F['b5'], 2), (F['b34'], 4)], [t])
        o += [salu('s_add_u32', sT0, sBASE, DWOFF + 256 - 64), valu('v_lshlrev_b32', t, 6, F['b01']),
              valu('v_lshlrev_b32', vTG0, 1, c), valu('v_sub_u32', vTG0, vTG0, t), valu('v_add_u32', vTG0, sT0, vTG0)]
        o += [salu('s_add_u32', sT0, sBASE, HT)]
        o += g.lin(vHW, [(F['b04'], 176), (F['b5'], 32)], sT0)
        o += g.lin(vHWH0, [(F['b03'], 176), (F['b45'], 8)], sT0)
        o += g.lin(vHR, [(c, 176), (F['b01'], 16)], sBASE)
        o += [salu('s_add_u32', sT0, sBASE, ST01)]
        o += g.lin(vSW, [(c, 64), (F['b01'], 16)], sT0)
        o += [salu('s_add_u32', sT0, sBASE, DWOFF), valu('v_mov_b32', t, 0)]
        o += g.lin(c, [(F['l'], 4)], sT0)
        o += [ds_write('ds_write_b32', c, t, 0), ds_write('ds_write_b32', c, t, 1280)]
        if role == 'A':
            o += [salu('s_lshl_b32', sT0, sw, 7)]
            o += g.lin(vW2V, [(F['b25'], 512), (F['b01'], 16)], sT0)
            o += g.lin(vW2T, [(F['b5'], 512), (F['b23'], 64), (F['b0'], 32), (F['b4'], 16), (F['b1'], 8)], sR2)
            o += [valu('v_add_u32', vR1, WAREA + ST01, vR0), valu('v_add_u32', vR2, WAREA + ST01 + 4 * WSTR, vR0)]
            o += [salu('s_add_u32', sSTG, sR2, 4096 + 127), salu('s_and_b32', sSTG, sSTG, 0xffffff80)]
            o += [valu('v_lshlrev_b32', t, 1, F['b5']), valu('v_xor_b32', t, t, F['b02'])]
            o += g.lin(vOW, [(F['b04'], 128), (t, 16)], sSTG)
            o += g.lin(vP0, [(F['l'], 16)], sSTG)
            o += [valu('v_xor_b32', t, F['b02'], F['b35'])]
            o += g.lin(vP1, [(F['b35'], 512), (t, 16)], sT0)
        o += [salu('s_mov_b32', sC1, 0xbfb8aa3b), salu('s_mov_b32', sC2, 0xbf317218)]
        return o

    def xread(g, buf, j, s, base=0):
        o = (8 + 16 * j + 4 * (s // 4)) * 1040 + 512 * ((s % 4) // 2) + 32 * (s % 2) - base
        return ds_read('ds_read_b128', buf, vXA, o)
    def w32read(g, s, ab):
        sl = ((2 * s + ab) % 8) * 1040
        return [ds_read('ds_read_b64_tr_b16', W1F(s, ab)[2 * t:2 * t + 2], vWT32, sl + 256 * t, needs=[g.tW[(s, ab)]]) for t in range(2)]
    def w16read(g, s, ab, ch):
        sl = ((2 * s + ab) % 8) * 1040
        return [ds_read('ds_read_b64_tr_b16', W16[ch][2 * t:2 * t + 2], vWT16, sl + 32 * ch + 256 * t,
                        needs=[g.tW[(s, ab)], g.tW[(s + 1, ab)]]) for t in range(2)]
    def xhread(g, n):
        return ds_read('ds_read_b128', XHF, vXH, 2 * (n // 2) * 1040 + 512 * (n % 2))

    def p1(g, bars, extra):
        o = []
        def anext(n):
            s = 2 * n
            pre = bars.get(n // 2, []) if n % 2 == 0 else []
            wa0, wa1 = g.w32read(s, 0), None
            lo, hi = g.w16read(s, 0, 0), g.w16read(s, 0, 1)
            wa1 = g.w32read(s + 1, 0)
            g.rdA[n] = [i.tok for i in wa0 + lo + hi + wa1]
            return {6: pre + [g.xread(FR[0], 0, s)], 7: [g.xread(FR[1], 1, s)], 8: wa0 + lo, 9: [g.xhread(n)] + hi,
                    10: [g.xread(FR[2], 0, s + 1)] + wa1, 11: [g.xread(FR[3], 1, s + 1)]}
        g.rdA = {}
        nx = anext(0)
        o += nx[6] + nx[8][:2] + nx[7] + nx[9][:1] + nx[8][2:] + nx[9][1:] + nx[10] + nx[11]
        for n in range(8):
            s = 2 * n
            c = lambda r, first: 0 if first else r
            m = [mfma(32, accA[0], FR[0], W1F(s, 0), c(accA[0], n == 0)), mfma(32, accA[1], FR[1], W1F(s, 0), c(accA[1], n == 0)),
                 mfma(16, accH[0:4], XHF, W16[0], c(accH[0:4], n == 0)), mfma(16, accH[4:8], XHF, W16[1], c(accH[4:8], n == 0)),
                 mfma(32, accA[0], FR[2], W1F(s + 1, 0), accA[0]), mfma(32, accA[1], FR[3], W1F(s + 1, 0), accA[1]),
                 mfma(32, accB[0], FR[0], W1F(s, 1), c(accB[0], n == 0)), mfma(32, accB[1], FR[1], W1F(s, 1), c(accB[1], n == 0)),
                 mfma(16, accH[8:12], XHF, W16[0], c(accH[8:12], n == 0)), mfma(16, accH[12:16], XHF, W16[1], c(accH[12:16], n == 0)),
                 mfma(32, accB[0], FR[2], W1F(s + 1, 1), accB[0]), mfma(32, accB[1], FR[3], W1F(s + 1, 1), accB[1])]
            fl = []
            wb0, lo, hi, wb1 = g.w32read(s, 1), g.w16read(s, 1, 0), g.w16read(s, 1, 1), g.w32read(s + 1, 1)
            rdB = [i.tok for i in wb0 + lo + hi + wb1]
            if n < 6: fl.append((1, g.w1ring(s + 4, 0, g.rdA[n])))
            fl += [(2, wb0 + lo)]
            if n < 6: fl.append((2, g.w1ring(s + 5, 0)))
            fl += [(3, hi), (4, wb1)]
            if n < 7:
                nx = anext(n + 1)
                fl += [(k, nx[k]) for k in (6, 7, 8, 9, 10, 11)]
            if n < 6:
                fl.append((7, g.w1ring(s + 4, 1, rdB)))
                fl.append((8, g.w1ring(s + 5, 1)))
            for p in range(12):
                if (n, p) in extra: fl.append((p, extra[(n, p)]))
            o += interleave(m, fl)
        return o

    def p3(g, w2):
        m, fl = [], []
        bx = lambda s, j: FR[2 * (s % 2) + j]
        pre = [g.xread(bx(0, 0), 2, 0, X2), g.xread(bx(0, 1), 3, 0, X2)]
        for s in range(16):
            c = lambda r: 0 if s == 0 else r
            m += [mfma(32, accA[0], bx(s, 0), W1F(s, 0), c(accA[0])), mfma(32, accB[0], bx(s, 0), W1F(s, 1), c(accB[0])),
                  mfma(32, accB[1], bx(s, 1), W1F(s, 1), c(accB[1])), mfma(32, accA[1], bx(s, 1), W1F(s, 0), c(accA[1]))]
            if s < 15:
                fl.append((4 * s, [g.xread(bx(s + 1, 0), 2, s + 1, X2)]))
                fl.append((4 * s + 2, [g.xread(bx(s + 1, 1), 3, s + 1, X2)]))
        tail = []
        if w2:
            tk = {}
            def ld(k, needs=()):
                ins, tk[k] = g.dmaop(vW2V, sW2, None, (k // 2) * 8192 + (k % 2) * 64, sR2, (k % 8) * 1040, needs=needs)
                return ins
            for k in range(8): fl.append((k, ld(k)))
            ev = []
            for k in range(32):
                i = int(g.o.w2i0 + g.o.w2r * k)
                assert i >= 4 * (k // 2) + 3
                rd = [ds_read('ds_read_b64_tr_b16', W1F(k // 2, k % 2)[2 * t:2 * t + 2], vW2T, (k % 8) * 1040 + 256 * t, needs=[tk[k]]) for t in range(2)]
                ev.append((i, 0, rd))
                if k + 8 < 32: ev.append((i + 2, 1, ld(k + 8, [x.tok for x in rd])))
            ev.sort(key=lambda e: (e[0], e[1]))
            for i, _, ins in ev:
                if i <= 63: fl.append((i, ins))
                else: tail.append(ins)
        return pre, interleave(m, fl), tail

    def act(g, num, src, tmp, first, cst):
        o = []
        n = len(num)
        for i0 in range(0, n, 4):
            r = range(i0, min(i0 + 4, n))
            if first: o += [valu('v_mul_f32', tmp[i], sC1, src[i]) for i in r]
            o += [valu('v_exp_f32', tmp[i], tmp[i] if first else src[i]) for i in r]
            o += [valu('v_fma_f32', tmp[i], tmp[i], cst, cst) for i in r]
            o += [valu('v_rcp_f32', tmp[i], tmp[i]) for i in r]
            o += [valu('v_mul_f32', num[i], num[i], tmp[i]) for i in r]
            o.append(('grp', i0))
        return o
    def splice(g, o, after):
        out = []
        for x in o:
            if isinstance(x, tuple): out += after.get(x[1], [])
            else: out.append(x)
        return out

    def gluH(g):
        a = [accH[i] for i in range(8)]; b = [accH[8 + i] for i in range(8)]
        af = {}
        for ch in range(2):
            d = accH[8 + 2 * ch:10 + 2 * ch]
            af[4 * ch] = [valu('v_cvt_pk_bf16_f32', d[i], a[4 * ch + 2 * i], a[4 * ch + 2 * i + 1]) for i in range(2)] + \
                         [ds_write('ds_write_b64', vHWH, d, 2816 * ch)]
        return g.splice(g.act(a, b, b, True, sC2), af)

    def gluT(g, j):
        a = [accA[j][i] for i in range(16)]; b = [accB[j][i] for i in range(16)]
        af = {}
        for gi in range(4):
            af[4 * gi] = [valu('v_cvt_pk_bf16_f32', b[2 * gi + i], a[4 * gi + 2 * i], a[4 * gi + 2 * i + 1]) for i in range(2)]
            if gi % 2: af[4 * gi].append(ds_write('ds_write_b128', vHW, accB[j][4 * (gi // 2):4 * (gi // 2) + 4], 32 + 64 * j + 16 * (gi // 2)))
        return g.splice(g.act(a, b, b, True, sC2), af)

    def toeplitz(g):
        rd, fix = [], []
        for cg in range(2):
            for r in range(10):
                s, h = r // 2, r % 2
                t = V(80 + (10 * cg + r) % 14)
                rd.append(ds_read('ds_read_u16', TZ[cg][r], vTG, (4 * s + 2 * h) * 64 + 32 * cg, needs=[g.tDW]))
                rd.append(ds_read('ds_read_u16_d16_hi', t, vTG, (4 * s + 2 * h + 1) * 64 + 32 * cg))
                fix.append(valu('v_or_b32', TZ[cg][r], TZ[cg][r], t))
        return rd, fix

    def convread(g, jp):
        return [ds_read('ds_read_b128', CB[cg][e], vHR, 32 + 2816 * cg + (4 * jp + e) * 16) for e in range(3) for cg in range(2)]
    def conv(g):
        o = []
        for s in range(5):
            for cg in range(2):
                for q in range(2):
                    gi = q + s; d = accH[8 * cg + 4 * q:8 * cg + 4 * q + 4]
                    o.append(mfma(4, d, TZ[cg][2 * s:2 * s + 2], CB[cg][gi // 2][2 * (gi % 2):2 * (gi % 2) + 2], 0 if s == 0 else d))
        return o
    def carry(g):
        return [ds_write('ds_write_b128', vHR, CB[cg][2], 2816 * cg) for cg in range(2)]
    def silu(g, imm):
        x = [accH[i] for i in range(16)]; t = [TMP[i % 8] for i in range(16)]
        af = {}
        for gi in range(4):
            cg = gi // 2
            af[4 * gi] = [valu('v_cvt_pk_bf16_f32', x[8 * cg + 2 * (gi % 2) + i], x[4 * gi + 2 * i], x[4 * gi + 2 * i + 1]) for i in range(2)]
            if gi % 2: af[4 * gi].append(ds_write('ds_write_b128', vSW, accH[8 * cg:8 * cg + 4], imm + 1024 * cg))
        return g.splice(g.act(x, x, t, False, sC1), af)

    def v1(g, role):
        o = [prio(g.o.prioV), valu('v_mov_b32', vTG, vTG0), valu('v_mov_b32', vHWH, vHWH0)]
        if role == 'A': o += [valu('v_mov_b32', vOR, vP0), valu('v_mov_b32', vOV, vP1)]
        rd, fix = g.toeplitz()
        n1 = 28
        main = g.gluH() + g.gluT(0)
        o += sprinkle(main, rd[:n1])
        o += fix[:n1 // 2]
        o += g.convread(0)
        o += sprinkle(g.gluT(1), rd[n1:])
        o += fix[n1 // 2:]
        o += g.ts(role, 'glu')
        o += g.conv() + g.convread(1)
        o += g.silu(0)
        o += g.conv() + g.carry()
        o += g.silu(2048)
        return o

    def sread(g, j, s):
        w, cg = s // 2, s % 2
        if j < 2: base, o = (vR1, WSTR * w + 2048 * j) if w < 4 else (vR2, WSTR * (w - 4) + 2048 * j)
        elif w < 4: base, o = vR0, R2STR * w + 2048 * (j - 2)
        elif j == 2: base, o = vR0, R2STR * (w - 4) + 8320
        else: base, o = vR0, X2 + 2048 * (w - 4)
        return [ds_read('ds_read_b64_tr_b16', FR[s % 4][2 * t:2 * t + 2], base, o + 1024 * cg + 256 * t) for t in range(2)]
    def g2acc(g, j): return [V(48, 16), V(64, 16)] if j % 2 == 0 else [V(16, 16), V(32, 16)]
    def g2(g, j, side=(), s0=2):
        acc = g.g2acc(j)
        pre = g.sread(j, 0) + g.sread(j, 1)
        m, fl = [], []
        for s in range(16):
            for mt in range(2): m.append(mfma(32, acc[mt], W1F(s, mt), FR[s % 4], 0 if s == 0 else acc[mt]))
            if s + 2 < 16: fl.append((2 * s, g.sread(j, s + 2)))
        for k, grp in enumerate(side): fl.append((s0 + k, grp))
        return pre, interleave(m, fl)
    def epilogue(g, j):
        acc = g.g2acc(j); RB = V(0, 16); gr = []
        tmp = V(96 + 0)
        for mt in range(2):
            for e in range(2):
                x = [valu('v_cvt_pk_bf16_f32', acc[mt][4 * e + i], acc[mt][8 * e + 2 * i], acc[mt][8 * e + 2 * i + 1]) for i in range(4)]
                k = 4 * mt + e
                if k:
                    x.append(valu('v_xor_b32', g.vOT, 16 * k, vOW)); ad = g.vOT
                else: ad = vOW
                x.append(ds_write('ds_write_b128', ad, acc[mt][4 * e:4 * e + 4], 0))
                gr.append(x)
        for p in range(4): gr.append([ds_read('ds_read_b128', RB[4 * p:4 * p + 4], vOR, 1024 * p)])
        gr.append([]); gr.append([])
        for p in range(4):
            gr.append([salu('s_mov_b32', sSO, (32 * j + 8 * p) * 512),
                       vstore('buffer_store_dwordx4', RB[4 * p:4 * p + 4], vOV, sOUT, sSO, flags=g.o.stflags)])
        return gr

    def streamA(g):
        g.tW = {}
        o = []
        o += [salu('s_lshl_b32', sT0, sw, 7), salu('s_add_u32', sT0, sT0, sROW), salu('s_sub_u32', sT0, sT0, 4096),
              valu('v_add_u32', V(7), sT0, g.vXV), salu('s_mul_i32', sT1, sw, 2080), valu('v_add_u32', V(8), 4096, V(7))]
        i0, tH0 = g.dmaop(V(7), sX, None, 0, sT1, 0, flags=g.o.xflags)
        i1, tH1 = g.dmaop(V(8), sX, None, 0, sT1, 1040, flags=g.o.xflags)
        o += i0 + i1 + g.w1v() + g.prefill() + g.dwload()
        g.vXV2 = V(116); o.append(valu('v_mov_b32', g.vXV2, g.vXV))
        o += g.addrs('A')
        o += g.ts('A', 'pro')
        o.append(prio(g.o.prioA1))
        bars = {q: [barrier([tH0, tH1] if q == 0 else [], note=f'bar{q+1}')] for q in range(4)}
        extra = {}; x2t = []
        if g.o.x2mode in ('A_late', 'split'):
            x2, x2t = g.x2load('full' if g.o.x2mode == 'A_late' else 'T3')
            pos = [(n, p) for n in (6, 7) for p in (0, 1, 5, 6, 7)]
            for k, ins in enumerate(x2): extra[pos[k]] = ins
        o += g.p1(bars, extra)
        o += g.ts('A', 'p1')
        o += g.v1('A')
        o += [valu('v_add_u32', vXA, X2, vXA)]
        o += g.ts('A', 'v1')
        o.append(barrier(x2t, drain_lgkm=True, note='bar5'))
        o.append(prio(0))
        o += g.ts('A', 'b5')
        pre, m, tail = g.p3(True)
        o += pre + m
        o += g.ts('A', 'p3')
        o += [prio(g.o.prioV), salu('s_sub_u32', sT0, sR2, sBASE), salu('s_sub_u32', sT0, sT0, ST01), valu('v_add_u32', vSW, sT0, vSW)]
        o += sprinkle(g.gluT(0), tail, per=1)
        o.append(barrier(note='bar6'))
        o += g.ts('A', 'b6')
        o += g.convread(0)
        o += g.gluT(1)
        o += g.conv() + g.convread(1)
        o += g.silu(0)
        o += g.conv()
        o += g.silu(2048)
        g.vOT = V(96)
        o.append(prio(0))
        o += g.ts('A', 'v2')
        side = []
        for j in range(4):
            if j >= 2: o.append(barrier(drain_lgkm=(j == 2), note=f'bar{5+j}'))
            pre, m = g.g2(j, side)
            o += pre + m
            side = g.epilogue(j)
            if j in (1, 2): o += g.ts('A', f'g{j}')
        for grp in side: o += grp
        o += g.ts('A', 'end')
        return o + g.fin('A')

    def streamB(g):
        g.tW = {}
        o = []; tq = {}
        def xq(q):
            r = []; tq[q] = []
            for gr in range(2):
                ins, t = g.dmaop(g.vXV, sX, sXS, 8 * 512 + 4096 * gr + 128 * q, sXL, (8 + 4 * q + gr) * 1040, flags=g.o.xflags)
                r += ins; tq[q].append(t)
            return r
        o += xq(0)
        o += [salu('s_lshr_b32', sT0, S(2), 3), salu('s_and_b32', sT0, sT0, 31), salu('s_lshl_b32', sT0, sT0, 2), salu('s_add_u32', sT0, sT0, sU),
              salu('s_lshl_b32', sT1, sT0, 11), salu('s_lshl_b32', sT0, sT0, 10),
              valu('v_and_b32', V(8), 63, V(0)), valu('v_lshlrev_b32', V(9), 5, V(8)), valu('v_lshlrev_b32', V(8), 4, V(8)),
              vload('buffer_load_dword', V(126), V(9), sW1, sT1), vload('buffer_load_dword', V(127), V(8), sW2, sT0)]
        o += xq(1) + xq(2) + xq(3)
        o += g.w1v() + g.prefill() + g.dwload()
        g.vXV2 = g.vXV; x2t = []
        if g.o.x2mode in ('B_start', 'split'):
            x2, x2t = g.x2load('full' if g.o.x2mode == 'B_start' else 'T2')
            for ins in x2: o += ins
        o += g.addrs('B')
        o += g.ts('B', 'pro')
        for q in range(4): o.append(barrier(tq[q], note=f'bar{q+1}'))
        o += g.ts('B', 'b4')
        o += g.p1({}, {})
        o += g.ts('B', 'p1')
        o.append(barrier(x2t, drain_lgkm=True, note='bar5'))
        o += g.ts('B', 'b5')
        o += g.v1('B')
        o += [valu('v_add_u32', vXA, X2, vXA)]
        o += g.ts('B', 'v1')
        o.append(barrier(drain_lgkm=True, note='bar6'))
        o.append(prio(0))
        o += g.ts('B', 'b6')
        pre, m, _ = g.p3(False)
        o += pre + m
        o += g.ts('B', 'p3')
        o += [prio(g.o.prioV), salu('s_sub_u32', sT0, sR2, sBASE), salu('s_add_u32', sT0, sT0, 8320 - ST01), valu('v_add_u32', vSW, sT0, vSW)]
        o += g.gluT(0)
        o += g.convread(0)
        o += g.gluT(1)
        o += g.conv() + g.convread(1)
        o += g.silu(0)
        o.append(barrier(drain_lgkm=True, note='bar7'))
        o += g.ts('B', 'b7')
        o += [salu('s_mul_i32', sT0, sU, 2048 - R2STR), salu('s_add_u32', sT0, sT0, X2 - 8320), valu('v_add_u32', vSW, sT0, vSW)]
        o += g.conv()
        o += g.silu(0)
        o.append(barrier(drain_lgkm=True, note='bar8'))
        o += g.ts('B', 'end')
        return o + g.fin('B')

    def fin(g, role):
        o = []
        if g.o.ts:
            t = Tok()
            o.append(I('wait', 's_waitcnt vmcnt(0)'))
            o += [I('smem', f's_memrealtime {S(92, 2)}', wr=S(92, 2).regs(), tok=t), waitfor([t])]
            o.append(valu('v_mov_b32', V(1), 0))
            for n in range(1, len(g.nts[role]) + 1):
                o += [salu('s_sub_u32', sT0, S(sTS + 2 * n), S(sTS)), raw(f'v_writelane_b32 v1, {sT0}, {n-1}', 'valu', rd=sT0.regs(), wr=[('v', 1)])]
            o += [raw(f'v_writelane_b32 v1, s90, {NTS-2}', 'valu', wr=[('v', 1)]), raw(f'v_writelane_b32 v1, s92, {NTS-1}', 'valu', wr=[('v', 1)])]
            o += [salu('s_lshl_b32', sT0, S(2), 3), salu('s_add_u32', sT0, sT0, sw), salu('s_mul_i32', sT0, sT0, NTS * 4),
                  valu('v_and_b32', V(2), 63, V(1)), raw('v_mbcnt_lo_u32_b32 v2, -1, 0', 'valu', wr=[('v', 2)]),
                  raw('v_mbcnt_hi_u32_b32 v2, -1, v2', 'valu', rd=[('v', 2)], wr=[('v', 2)]),
                  valu('v_lshlrev_b32', V(2), 2, V(2)), raw(f's_mov_b64 exec, {hex((1 << NTS) - 1)}'), raw('s_nop 4'),
                  vstore('buffer_store_dword', V(1), V(2), sWS, sT0)]
        o.append(raw('s_endpgm'))
        return o

    def build(g):
        c = g.common()
        a, b = g.streamA(), g.streamB()
        nb = lambda x: sum(i.kind == 'bar' for i in x)
        assert nb(a) == nb(b), (nb(a), nb(b))
        fa, fb = finalize(c + a), finalize(c + b)
        n = len(finalize(c))
        assert [i.text for i in fa[:n]] == [i.text for i in fb[:n]]
        hdr = open('standalone__conformer_conv_module__speech.s.ref').read().split('; Override launch')[0]
        t = hdr + '; @launch grid=(250,1,1) block=(512,1,1) lds=163840\n'
        t += f'.amdgcn_target "amdgcn-amd-amdhsa--gfx950"\n.text\n.globl {K}\n.p2align 8\n.type {K},@function\n{K}:\n'
        t += text(fa) + 'L_B:\n' + text(fb[n:]) + 'L_END:\n    s_endpgm\n'
        t += f'''.section .rodata,"a"
.p2align 6
.amdhsa_kernel {K}
  .amdhsa_next_free_vgpr 256
  .amdhsa_next_free_sgpr 102
  .amdhsa_accum_offset 128
  .amdhsa_group_segment_fixed_size 0
  .amdhsa_kernarg_size 56
  .amdhsa_user_sgpr_count 2
  .amdhsa_user_sgpr_kernarg_segment_ptr 1
  .amdhsa_system_sgpr_workgroup_id_x 1
.end_amdhsa_kernel
'''
        g.fa, g.fb = fa, fb
        return t

def parse_opts(args):
    kw = {}
    for a in args:
        k, v = a.split('=')
        try: v = eval(v)
        except Exception: pass
        kw[k] = v
    return kw

if __name__ == '__main__':
    out = sys.argv[1]
    g = Gen(**parse_opts(sys.argv[2:]))
    t = g.build(); open(out, 'w').write(t)
    from collections import Counter
    for nm, f in (('A', g.fa), ('B', g.fb)):
        c = Counter(i.kind for i in f)
        print(nm, len(f), dict(c), g.nts.get(nm))
```

```python
import sys
from ir import *

K = 'standalone__conformer_conv_module__speech_kernel'
X2, WAREA, WSTR, R2STR = 41600, 74880, 11120, 10400
DWOFF, HT, ST01 = 8320, 32, 5696
NTS = 16

sX, sW1, sW2, sDW, sOUT, sWS = S(4, 4), S(8, 4), S(12, 4), S(16, 4), S(20, 4), S(24, 4)
sw, sBASE, sSO, sROW, sC1, sC2, sR2, sT0, sT1, sXS, sXL, sU, sSTG = [S(28 + i) for i in range(13)]
sTS = 44

accH = V(0, 16)
accA = [V(16, 16), V(48, 16)]
accB = [V(32, 16), V(64, 16)]
FR = [V(80 + 4 * i, 4) for i in range(4)]
XHF, W16 = V(96, 4), [V(100, 4), V(104, 4)]
TZ = [V(108, 10), V(96, 10)]
vXH, vWT16, vW1V, vWT32, vTG0, vHWH0, vP0, vP1 = [V(108 + i) for i in range(8)]
vTG, vHWH = V(95), V(94)
vXA, vHW, vHR, vSW, vW2V, vW2T, vR0, vR1, vR2, vOW = [V(118 + i) for i in range(10)]
vOR, vOV = V(106), V(107)
CB = [[V(16, 4), V(20, 4), V(24, 4)], [V(28, 4), V(40, 4), V(44, 4)]]
TMP = V(32, 8)

def W1F(s, ab): return A(8 * s + 4 * ab, 4)

class Opt(dict):
    __getattr__ = dict.get

DEF = Opt(x2mode='B_start', w2i0=12, w2r=2.0, ts=False, prioV=2, prioA1=1, stflags=' sc0 sc1 nt', xflags=' nt')

class Gen:
    def __init__(g, **kw):
        g.o = Opt(DEF); g.o.update(kw)
        g.nts = {}

    def ts(g, role, name):
        if not g.o.ts: return []
        k = g.nts.setdefault(role, [])
        k.append(name); n = len(k)
        assert n <= NTS - 3
        t = Tok()
        return [I('smem', f's_memtime {S(sTS + 2 * n, 2)}', wr=S(sTS + 2 * n, 2).regs(), tok=t), waitfor([t])]

    def fields(g, names, tmp0):
        spec = dict(l=(0, 6), b01=(0, 2), b0=(0, 1), b1=(1, 1), b2=(2, 1), b3=(3, 1), b4=(4, 1), b5=(5, 1), b23=(2, 2),
                    b234=(2, 3), b25=(2, 4), b03=(0, 4), b04=(0, 5), b02=(0, 3), b45=(4, 2), b35=(3, 3), b34=(3, 2))
        ins, m = [], {}
        for i, n in enumerate(names):
            r = V(tmp0 + i); sh, nb = spec[n]
            ins.append(valu('v_bfe_u32', r, V(0), sh, nb)); m[n] = r
        return ins, m

    def lin(g, dst, terms, base):
        ins = []; cur = None
        for r, mul in terms:
            p2 = mul & (mul - 1) == 0
            if cur is None:
                if p2: ins.append(valu('v_lshlrev_b32', dst, mul.bit_length() - 1, r))
                else: ins.append(valu('v_mul_u32_u24', dst, mul, r))
                cur = dst
            elif p2: ins.append(valu('v_lshl_add_u32', dst, r, mul.bit_length() - 1, dst))
            else:
                ins.append(salu('s_mov_b32', sT1, mul)); ins.append(valu('v_mad_u32_u24', dst, r, sT1, dst))
        for b in (base if isinstance(base, list) else [base]):
            if isinstance(b, Op) or b: ins.append(valu('v_add_u32', dst, b, dst))
        return ins

    def m0set(g, base, imm):
        if base is None: return salu('s_mov_b32', M0, imm)
        return salu('s_add_u32', M0, base, imm) if imm else salu('s_mov_b32', M0, base)

    def dmaop(g, voff, srd, sbase, simm, lbase, limm, flags='', needs=()):
        ins = []
        if sbase is None and 0 <= simm <= 64: so = simm
        elif sbase is not None and simm == 0: so = sbase
        else:
            ins.append(salu('s_mov_b32', sSO, simm) if sbase is None else salu('s_add_u32', sSO, sbase, simm)); so = sSO
        ins.insert(0, g.m0set(lbase, limm))
        d = dma(voff, srd, so, flags=flags, needs=needs); ins.append(d)
        return ins, d.tok

    def common(g):
        o = []
        o.append(salu('s_cmp_ge_u32', None, S(2), 250))
        o.append(raw('s_cbranch_scc1 L_END'))
        loads = [(sX, 0), (sW1, 8), (sW2, 24), (sDW, 16), (sOUT, 32)] + ([(sWS, 48)] if g.o.ts else [(sWS, 40)] if g.o.dbg else [])
        for r, a in loads:
            o.append(I('smem', f's_load_dwordx2 {r[0:2]}, s[0:1], {a}', wr=r[0:2].regs(), tok=Tok()))
        if g.o.ts or g.o.dbg:
            o.append(I('smem', f's_memrealtime {S(90, 2)}', wr=S(90, 2).regs(), tok=Tok()))
            o.append(I('smem', f's_memtime {S(sTS, 2)}', wr=S(sTS, 2).regs(), tok=Tok()))
        o.append(valu('v_lshrrev_b32', V(1), 6, V(0)))
        o.append(salu('s_cmp_ge_u32', None, S(2), 125))
        o.append(I('valu', f'v_readfirstlane_b32 {sw}, v1', rd=[('v', 1)], wr=sw.regs()))
        o.append(salu('s_cselect_b32', sT0, 125, 0))
        o.append(salu('s_cselect_b32', sT1, 8192000, 0))
        o.append(salu('s_sub_u32', sROW, S(2), sT0))
        o.append(salu('s_lshl_b32', sROW, sROW, 16))
        f, F = g.fields(['b234', 'b5', 'b01', 'b25'], 2)
        g.F0 = F
        o += f
        o += g.lin(V(6), [(F['b234'], 512), (F['b5'], 64), (F['b01'], 16)], 0)
        g.vXV = V(6)
        for r, n in ((sX, 8192000), (sW1, 262144), (sW2, 131072), (sDW, 7680), (sOUT, 65536)):
            o.append(salu('s_mov_b32', r[2], n)); o.append(salu('s_mov_b32', r[3], 0x20000))
        if g.o.ts or g.o.dbg:
            o.append(salu('s_mov_b32', sWS[2], 1 << 20 if g.o.ts else 256)); o.append(salu('s_mov_b32', sWS[3], 0x20000))
        o.append(salu('s_and_b32', sU, sw, 3))
        o.append(salu('s_mul_i32', sBASE, sw, WSTR))
        o.append(salu('s_add_u32', sBASE, sBASE, WAREA))
        o.append(salu('s_mul_i32', sR2, sU, R2STR))
        o.append(salu('s_lshl_b32', sXS, sU, 13))
        o.append(salu('s_add_u32', sXS, sXS, sROW))
        o.append(salu('s_lshr_b32', sT0, sU, 1))
        o.append(salu('s_mul_i32', sXL, sT0, 12 * 1040))
        o.append(salu('s_mul_i32', sT0, sU, 2 * 1040))
        o.append(salu('s_add_u32', sXL, sXL, sT0))
        o.append(I('mark', '', needs=[], drain_lgkm=True))
        o.append(salu('s_add_u32', sX[0], sX[0], sT1))
        o.append(salu('s_addc_u32', sX[1], sX[1], 0))
        o.append(salu('s_add_u32', sT1, sT1, sROW))
        o.append(salu('s_add_u32', sOUT[0], sOUT[0], sT1))
        o.append(salu('s_addc_u32', sOUT[1], sOUT[1], 0))
        o.append(salu('s_cmp_ge_u32', None, sw, 4))
        o.append(raw('s_cbranch_scc1 L_B'))
        return o

    def w1ring(g, s, ab, needs=()):
        ins, t = g.dmaop(vW1V, sW1, None, s * 16384 + ab * 512, sBASE, ((2 * s + ab) % 8) * 1040, needs=needs)
        g.tW[(s, ab)] = t
        return ins

    def w1v(g):
        F = g.F0
        return [salu('s_lshl_b32', sT0, sw, 6)] + g.lin(vW1V, [(F['b25'], 1024), (F['b01'], 16)], sT0)

    def prefill(g):
        o = []
        for s, ab in ((0, 0), (1, 0), (0, 1), (1, 1), (2, 0), (3, 0), (2, 1), (3, 1)): o += g.w1ring(s, ab)
        return o

    def dwload(g):
        F = g.F0
        o = [salu('s_lshl_b32', sT0, sw, 6)] + g.lin(V(7), [(F['b25'], 512), (F['b01'], 16)], sT0)
        ins, g.tDW = g.dmaop(V(7), sDW, None, 0, sBASE, DWOFF + 256)
        return o + ins

    def x2load(g, mode):
        o = []; toks = []
        if mode == 'full':
            for q in range(4):
                for gr in range(2):
                    ins, t = g.dmaop(g.vXV2, sX, sXS, 72 * 512 + 4096 * gr + 128 * q, sXL, X2 + (4 * q + gr) * 1040, flags=g.o.xflags)
                    o.append(ins); toks.append(t)
        else:
            jj = 0 if mode == 'T2' else 1
            pre = [salu('s_lshl_b32', sT0, sU, 12), salu('s_add_u32', sT0, sT0, sROW), salu('s_mul_i32', sT1, sU, 1040)]
            for q in range(4):
                ins, t = g.dmaop(g.vXV2, sX, sT0, (72 + 32 * jj) * 512 + 128 * q, sT1, X2 + (16 * jj + 4 * q) * 1040, flags=g.o.xflags)
                o.append(pre + ins); pre = []; toks.append(t)
        return o, toks

    def addrs(g, role):
        F0 = g.F0
        f, F = g.fields(['b0', 'b1', 'b2', 'b3', 'b4', 'b23', 'b03', 'b04', 'b02', 'b45', 'b35', 'b34', 'l'], 8)
        F.update(F0)
        o = list(f)
        o += g.lin(vXA, [(F['b2'], 2080), (F['b4'], 1040), (F['b3'], 256), (F['b01'], 64), (F['b5'], 16)], 0)
        o += g.lin(vXH, [(F['b3'], 1040), (F['b02'], 64), (F['b4'], 32), (F['b5'], 16)], 0)
        o += g.lin(vR0, [(F['b5'], 512), (F['b23'], 64), (F['b01'], 8)], 0)
        o += g.lin(vWT16, [(F['b4'], 2080)], [vR0, sBASE])
        o += [valu('v_lshl_add_u32', vR0, F['b4'], 5, vR0)]
        o += [valu('v_add_u32', vWT32, sBASE, vR0)]
        c, t = V(24), V(25)
        o += [valu('v_bcnt_u32_b32', t, F['b234'], 0), valu('v_and_b32', t, 1, t)]
        o += g.lin(c, [(F['b5'], 2), (F['b34'], 4)], [t])
        o += [salu('s_add_u32', sT0, sBASE, DWOFF + 256 - 64), valu('v_lshlrev_b32', t, 6, F['b01']),
              valu('v_lshlrev_b32', vTG0, 1, c), valu('v_sub_u32', vTG0, vTG0, t), valu('v_add_u32', vTG0, sT0, vTG0)]
        o += [salu('s_add_u32', sT0, sBASE, HT)]
        o += g.lin(vHW, [(F['b04'], 176), (F['b5'], 32)], sT0)
        o += g.lin(vHWH0, [(F['b03'], 176), (F['b45'], 8)], sT0)
        o += g.lin(vHR, [(c, 176), (F['b01'], 16)], sBASE)
        o += [salu('s_add_u32', sT0, sBASE, ST01)]
        o += g.lin(vSW, [(c, 64), (F['b01'], 16)], sT0)
        o += [salu('s_add_u32', sT0, sBASE, DWOFF), valu('v_mov_b32', t, 0)]
        o += g.lin(c, [(F['l'], 4)], sT0)
        o += [ds_write('ds_write_b32', c, t, 0), ds_write('ds_write_b32', c, t, 1280)]
        if role == 'A':
            o += [salu('s_lshl_b32', sT0, sw, 7)]
            o += g.lin(vW2V, [(F['b25'], 512), (F['b01'], 16)], sT0)
            o += g.lin(vW2T, [(F['b5'], 512), (F['b23'], 64), (F['b0'], 32), (F['b4'], 16), (F['b1'], 8)], sR2)
            o += [valu('v_add_u32', vR1, WAREA + ST01, vR0), valu('v_add_u32', vR2, WAREA + ST01 + 4 * WSTR, vR0)]
            o += [salu('s_add_u32', sSTG, sR2, 4096 + 127), salu('s_and_b32', sSTG, sSTG, 0xffffff80)]
            o += [valu('v_lshlrev_b32', t, 1, F['b5']), valu('v_xor_b32', t, t, F['b02'])]
            o += g.lin(vOW, [(F['b04'], 128), (t, 16)], sSTG)
            o += g.lin(vP0, [(F['l'], 16)], sSTG)
            o += [valu('v_xor_b32', t, F['b02'], F['b35'])]
            o += g.lin(vP1, [(F['b35'], 512), (t, 16)], sT0)
        o += [salu('s_mov_b32', sC1, 0xbfb8aa3b), salu('s_mov_b32', sC2, 0xbf317218)]
        return o

    def xread(g, buf, j, s, base=0):
        o = (8 + 16 * j + 4 * (s // 4)) * 1040 + 512 * ((s % 4) // 2) + 32 * (s % 2) - base
        return ds_read('ds_read_b128', buf, vXA, o)
    def w32read(g, s, ab):
        sl = ((2 * s + ab) % 8) * 1040
        return [ds_read('ds_read_b64_tr_b16', W1F(s, ab)[2 * t:2 * t + 2], vWT32, sl + 256 * t, needs=[g.tW[(s, ab)]]) for t in range(2)]
    def w16read(g, s, ab, ch):
        sl = ((2 * s + ab) % 8) * 1040
        return [ds_read('ds_read_b64_tr_b16', W16[ch][2 * t:2 * t + 2], vWT16, sl + 32 * ch + 256 * t,
                        needs=[g.tW[(s, ab)], g.tW[(s + 1, ab)]]) for t in range(2)]
    def xhread(g, n):
        return ds_read('ds_read_b128', XHF, vXH, 2 * (n // 2) * 1040 + 512 * (n % 2))

    def p1(g, bars, extra):
        o = []
        def anext(n):
            s = 2 * n
            pre = bars.get(n // 2, []) if n % 2 == 0 else []
            wa0, wa1 = g.w32read(s, 0), None
            lo, hi = g.w16read(s, 0, 0), g.w16read(s, 0, 1)
            wa1 = g.w32read(s + 1, 0)
            g.rdA[n] = [i.tok for i in wa0 + lo + hi + wa1]
            return {6: pre + [g.xread(FR[0], 0, s)], 7: [g.xread(FR[1], 1, s)], 8: wa0 + lo, 9: [g.xhread(n)] + hi,
                    10: [g.xread(FR[2], 0, s + 1)] + wa1, 11: [g.xread(FR[3], 1, s + 1)]}
        g.rdA = {}
        nx = anext(0)
        o += nx[6] + nx[8][:2] + nx[7] + nx[9][:1] + nx[8][2:] + nx[9][1:] + nx[10] + nx[11]
        for n in range(8):
            s = 2 * n
            c = lambda r, first: 0 if first else r
            m = [mfma(32, accA[0], FR[0], W1F(s, 0), c(accA[0], n == 0)), mfma(32, accA[1], FR[1], W1F(s, 0), c(accA[1], n == 0)),
                 mfma(16, accH[0:4], XHF, W16[0], c(accH[0:4], n == 0)), mfma(16, accH[4:8], XHF, W16[1], c(accH[4:8], n == 0)),
                 mfma(32, accA[0], FR[2], W1F(s + 1, 0), accA[0]), mfma(32, accA[1], FR[3], W1F(s + 1, 0), accA[1]),
                 mfma(32, accB[0], FR[0], W1F(s, 1), c(accB[0], n == 0)), mfma(32, accB[1], FR[1], W1F(s, 1), c(accB[1], n == 0)),
                 mfma(16, accH[8:12], XHF, W16[0], c(accH[8:12], n == 0)), mfma(16, accH[12:16], XHF, W16[1], c(accH[12:16], n == 0)),
                 mfma(32, accB[0], FR[2], W1F(s + 1, 1), accB[0]), mfma(32, accB[1], FR[3], W1F(s + 1, 1), accB[1])]
            fl = []
            wb0, lo, hi, wb1 = g.w32read(s, 1), g.w16read(s, 1, 0), g.w16read(s, 1, 1), g.w32read(s + 1, 1)
            rdB = [i.tok for i in wb0 + lo + hi + wb1]
            if n < 6: fl.append((1, g.w1ring(s + 4, 0, g.rdA[n])))
            fl += [(2, wb0 + lo)]
            if n < 6: fl.append((2, g.w1ring(s + 5, 0)))
            fl += [(3, hi), (4, wb1)]
            if n < 7:
                nx = anext(n + 1)
                fl += [(k, nx[k]) for k in (6, 7, 8, 9, 10, 11)]
            if n < 6:
                fl.append((7, g.w1ring(s + 4, 1, rdB)))
                fl.append((8, g.w1ring(s + 5, 1)))
            for p in range(12):
                if (n, p) in extra: fl.append((p, extra[(n, p)]))
            o += interleave(m, fl)
        return o

    def p3(g, w2):
        m, fl = [], []
        bx = lambda s, j: FR[2 * (s % 2) + j]
        pre = [g.xread(bx(0, 0), 2, 0, X2), g.xread(bx(0, 1), 3, 0, X2)]
        for s in range(16):
            c = lambda r: 0 if s == 0 else r
            m += [mfma(32, accA[0], bx(s, 0), W1F(s, 0), c(accA[0])), mfma(32, accB[0], bx(s, 0), W1F(s, 1), c(accB[0])),
                  mfma(32, accB[1], bx(s, 1), W1F(s, 1), c(accB[1])), mfma(32, accA[1], bx(s, 1), W1F(s, 0), c(accA[1]))]
            if s < 15:
                fl.append((4 * s, [g.xread(bx(s + 1, 0), 2, s + 1, X2)]))
                fl.append((4 * s + 2, [g.xread(bx(s + 1, 1), 3, s + 1, X2)]))
        tail = []
        if w2:
            tk = {}
            def ld(k, needs=()):
                ins, tk[k] = g.dmaop(vW2V, sW2, None, (k // 2) * 8192 + (k % 2) * 64, sR2, (k % 8) * 1040, needs=needs)
                return ins
            for k in range(8): fl.append((k, ld(k)))
            ev = []
            for k in range(32):
                i = int(g.o.w2i0 + g.o.w2r * k)
                assert i >= 4 * (k // 2) + 3
                rd = [ds_read('ds_read_b64_tr_b16', W1F(k // 2, k % 2)[2 * t:2 * t + 2], vW2T, (k % 8) * 1040 + 256 * t, needs=[tk[k]]) for t in range(2)]
                ev.append((i, 0, rd))
                if k + 8 < 32: ev.append((i + 2, 1, ld(k + 8, [x.tok for x in rd])))
            ev.sort(key=lambda e: (e[0], e[1]))
            for i, _, ins in ev:
                if i <= 63: fl.append((i, ins))
                else: tail.append(ins)
        return pre, interleave(m, fl), tail

    def act(g, num, src, tmp, first, cst):
        o = []
        n = len(num)
        for i0 in range(0, n, 4):
            r = range(i0, min(i0 + 4, n))
            if first: o += [valu('v_mul_f32', tmp[i], sC1, src[i]) for i in r]
            o += [valu('v_exp_f32', tmp[i], tmp[i] if first else src[i]) for i in r]
            o += [valu('v_fma_f32', tmp[i], tmp[i], cst, cst) for i in r]
            o += [valu('v_rcp_f32', tmp[i], tmp[i]) for i in r]
            o += [valu('v_mul_f32', num[i], num[i], tmp[i]) for i in r]
            o.append(('grp', i0))
        return o
    def splice(g, o, after):
        out = []
        for x in o:
            if isinstance(x, tuple): out += after.get(x[1], [])
            else: out.append(x)
        return out

    def gluH(g):
        a = [accH[i] for i in range(8)]; b = [accH[8 + i] for i in range(8)]
        af = {}
        for ch in range(2):
            d = accH[8 + 2 * ch:10 + 2 * ch]
            af[4 * ch] = [valu('v_cvt_pk_bf16_f32', d[i], a[4 * ch + 2 * i], a[4 * ch + 2 * i + 1]) for i in range(2)] + \
                         [ds_write('ds_write_b64', vHWH, d, 2816 * ch)]
        return g.splice(g.act(a, b, b, True, sC2), af)

    def gluT(g, j):
        a = [accA[j][i] for i in range(16)]; b = [accB[j][i] for i in range(16)]
        af = {}
        for gi in range(4):
            af[4 * gi] = [valu('v_cvt_pk_bf16_f32', b[2 * gi + i], a[4 * gi + 2 * i], a[4 * gi + 2 * i + 1]) for i in range(2)]
            if gi % 2: af[4 * gi].append(ds_write('ds_write_b128', vHW, accB[j][4 * (gi // 2):4 * (gi // 2) + 4], 32 + 64 * j + 16 * (gi // 2)))
        return g.splice(g.act(a, b, b, True, sC2), af)

    def toeplitz(g):
        rd, fix = [], []
        for cg in range(2):
            for r in range(10):
                s, h = r // 2, r % 2
                t = V(80 + (10 * cg + r) % 14)
                rd.append(ds_read('ds_read_u16', TZ[cg][r], vTG, (4 * s + 2 * h) * 64 + 32 * cg, needs=[g.tDW]))
                rd.append(ds_read('ds_read_u16_d16_hi', t, vTG, (4 * s + 2 * h + 1) * 64 + 32 * cg))
                fix.append(valu('v_or_b32', TZ[cg][r], TZ[cg][r], t))
        return rd, fix

    def convread(g, jp):
        return [ds_read('ds_read_b128', CB[cg][e], vHR, 32 + 2816 * cg + (4 * jp + e) * 16) for e in range(3) for cg in range(2)]
    def conv(g):
        o = []
        for s in range(5):
            for cg in range(2):
                for q in range(2):
                    gi = q + s; d = accH[8 * cg + 4 * q:8 * cg + 4 * q + 4]
                    o.append(mfma(4, d, TZ[cg][2 * s:2 * s + 2], CB[cg][gi // 2][2 * (gi % 2):2 * (gi % 2) + 2], 0 if s == 0 else d))
        return o
    def carry(g):
        return [ds_write('ds_write_b128', vHR, CB[cg][2], 2816 * cg) for cg in range(2)]
    def silu(g, imm):
        x = [accH[i] for i in range(16)]; t = [TMP[i % 8] for i in range(16)]
        af = {}
        for gi in range(4):
            cg = gi // 2
            af[4 * gi] = [valu('v_cvt_pk_bf16_f32', x[8 * cg + 2 * (gi % 2) + i], x[4 * gi + 2 * i], x[4 * gi + 2 * i + 1]) for i in range(2)]
            if gi % 2: af[4 * gi].append(ds_write('ds_write_b128', vSW, accH[8 * cg:8 * cg + 4], imm + 1024 * cg))
        return g.splice(g.act(x, x, t, False, sC1), af)

    def v1(g, role):
        o = [prio(g.o.prioV), valu('v_mov_b32', vTG, vTG0), valu('v_mov_b32', vHWH, vHWH0)]
        if role == 'A': o += [valu('v_mov_b32', vOR, vP0), valu('v_mov_b32', vOV, vP1)]
        rd, fix = g.toeplitz()
        n1 = 28
        main = g.gluH() + g.gluT(0)
        o += sprinkle(main, rd[:n1])
        o += fix[:n1 // 2]
        o += g.convread(0)
        o += sprinkle(g.gluT(1), rd[n1:])
        o += fix[n1 // 2:]
        o += g.ts(role, 'glu')
        o += g.conv() + g.convread(1)
        o += g.silu(0)
        o += g.conv() + g.carry()
        o += g.silu(2048)
        return o

    def sread(g, j, s):
        w, cg = s // 2, s % 2
        if j < 2: base, o = (vR1, WSTR * w + 2048 * j) if w < 4 else (vR2, WSTR * (w - 4) + 2048 * j)
        elif w < 4: base, o = vR0, R2STR * w + 2048 * (j - 2)
        elif j == 2: base, o = vR0, R2STR * (w - 4) + 8320
        else: base, o = vR0, X2 + 2048 * (w - 4)
        return [ds_read('ds_read_b64_tr_b16', FR[s % 4][2 * t:2 * t + 2], base, o + 1024 * cg + 256 * t) for t in range(2)]
    def g2acc(g, j): return [V(48, 16), V(64, 16)] if j % 2 == 0 else [V(16, 16), V(32, 16)]
    def g2(g, j, side=(), s0=2):
        acc = g.g2acc(j)
        pre = g.sread(j, 0) + g.sread(j, 1)
        m, fl = [], []
        for s in range(16):
            for mt in range(2): m.append(mfma(32, acc[mt], W1F(s, mt), FR[s % 4], 0 if s == 0 else acc[mt]))
            if s + 2 < 16: fl.append((2 * s, g.sread(j, s + 2)))
        for k, grp in enumerate(side): fl.append((s0 + k, grp))
        return pre, interleave(m, fl)
    def epilogue(g, j):
        acc = g.g2acc(j); RB = V(0, 16); gr = []
        tmp = V(96 + 0)
        for mt in range(2):
            for e in range(2):
                x = [valu('v_cvt_pk_bf16_f32', acc[mt][4 * e + i], acc[mt][8 * e + 2 * i], acc[mt][8 * e + 2 * i + 1]) for i in range(4)]
                k = 4 * mt + e
                if k:
                    x.append(valu('v_xor_b32', g.vOT, 16 * k, vOW)); ad = g.vOT
                else: ad = vOW
                x.append(ds_write('ds_write_b128', ad, acc[mt][4 * e:4 * e + 4], 0))
                gr.append(x)
        for p in range(4): gr.append([ds_read('ds_read_b128', RB[4 * p:4 * p + 4], vOR, 1024 * p)])
        gr.append([]); gr.append([])
        for p in range(4):
            gr.append([salu('s_mov_b32', sSO, (32 * j + 8 * p) * 512),
                       vstore('buffer_store_dwordx4', RB[4 * p:4 * p + 4], vOV, sOUT, sSO, flags=g.o.stflags)])
        return gr

    def streamA(g):
        g.tW = {}
        o = []
        o += [salu('s_lshl_b32', sT0, sw, 7), salu('s_add_u32', sT0, sT0, sROW), salu('s_sub_u32', sT0, sT0, 4096),
              valu('v_add_u32', V(7), sT0, g.vXV), salu('s_mul_i32', sT1, sw, 2080), valu('v_add_u32', V(8), 4096, V(7))]
        i0, tH0 = g.dmaop(V(7), sX, None, 0, sT1, 0, flags=g.o.xflags)
        i1, tH1 = g.dmaop(V(8), sX, None, 0, sT1, 1040, flags=g.o.xflags)
        o += i0 + i1 + g.w1v() + g.prefill() + g.dwload()
        g.vXV2 = V(116); o.append(valu('v_mov_b32', g.vXV2, g.vXV))
        o += g.addrs('A')
        o += g.ts('A', 'pro')
        o.append(prio(g.o.prioA1))
        bars = {q: [barrier([tH0, tH1] if q == 0 else [], note=f'bar{q+1}')] for q in range(4)}
        extra = {}; x2t = []
        if g.o.x2mode in ('A_late', 'split'):
            x2, x2t = g.x2load('full' if g.o.x2mode == 'A_late' else 'T3')
            pos = [(n, p) for n in (6, 7) for p in (0, 1, 5, 6, 7)]
            for k, ins in enumerate(x2): extra[pos[k]] = ins
        o += g.p1(bars, extra)
        o += g.ts('A', 'p1')
        o += g.v1('A')
        o += [valu('v_add_u32', vXA, X2, vXA)]
        o += g.ts('A', 'v1')
        o.append(barrier(x2t, drain_lgkm=True, note='bar5'))
        o.append(prio(0))
        o += g.ts('A', 'b5')
        pre, m, tail = g.p3(True)
        o += pre + m
        o += g.ts('A', 'p3')
        o += [prio(g.o.prioV), salu('s_sub_u32', sT0, sR2, sBASE), salu('s_sub_u32', sT0, sT0, ST01), valu('v_add_u32', vSW, sT0, vSW)]
        o += sprinkle(g.gluT(0), tail, per=1)
        o.append(barrier(note='bar6'))
        o += g.ts('A', 'b6')
        o += g.convread(0)
        o += g.gluT(1)
        o += g.conv() + g.convread(1)
        o += g.silu(0)
        o += g.conv()
        o += g.silu(2048)
        g.vOT = V(96)
        o.append(prio(0))
        o += g.ts('A', 'v2')
        side = []
        for j in range(4):
            if j >= 2: o.append(barrier(drain_lgkm=(j == 2), note=f'bar{5+j}'))
            pre, m = g.g2(j, side)
            o += pre + m
            side = g.epilogue(j)
            if j in (1, 2): o += g.ts('A', f'g{j}')
        for grp in side: o += grp
        for k in range(g.o.padm or 0): o.append(mfma(32, V(16 * (1 + k % 2), 16), A(0, 4), A(4, 4), 0))
        o += g.ts('A', 'end')
        return o + g.fin('A')

    def streamB(g):
        g.tW = {}
        o = []; tq = {}
        def xq(q):
            r = []; tq[q] = []
            for gr in range(2):
                ins, t = g.dmaop(g.vXV, sX, sXS, 8 * 512 + 4096 * gr + 128 * q, sXL, (8 + 4 * q + gr) * 1040, flags=g.o.xflags)
                r += ins; tq[q].append(t)
            return r
        o += xq(0)
        o += [salu('s_lshr_b32', sT0, S(2), 3), salu('s_and_b32', sT0, sT0, 31), salu('s_lshl_b32', sT0, sT0, 2), salu('s_add_u32', sT0, sT0, sU),
              salu('s_lshl_b32', sT1, sT0, 11), salu('s_lshl_b32', sT0, sT0, 10),
              valu('v_and_b32', V(8), 63, V(0)), valu('v_lshlrev_b32', V(9), 5, V(8)), valu('v_lshlrev_b32', V(8), 4, V(8)),
              vload('buffer_load_dword', V(126), V(9), sW1, sT1), vload('buffer_load_dword', V(127), V(8), sW2, sT0)]
        o += xq(1) + xq(2) + xq(3)
        o += g.w1v() + g.prefill() + g.dwload()
        g.vXV2 = g.vXV; x2t = []
        if g.o.x2mode in ('B_start', 'split'):
            x2, x2t = g.x2load('full' if g.o.x2mode == 'B_start' else 'T2')
            for ins in x2: o += ins
        o += g.addrs('B')
        o += g.ts('B', 'pro')
        for q in range(4): o.append(barrier(tq[q], note=f'bar{q+1}'))
        o += g.ts('B', 'b4')
        o += g.p1({}, {})
        o += g.ts('B', 'p1')
        o.append(barrier(x2t, drain_lgkm=True, note='bar5'))
        o += g.ts('B', 'b5')
        o += g.v1('B')
        o += [valu('v_add_u32', vXA, X2, vXA)]
        o += g.ts('B', 'v1')
        o.append(barrier(drain_lgkm=True, note='bar6'))
        o.append(prio(0))
        o += g.ts('B', 'b6')
        pre, m, _ = g.p3(False)
        o += pre + m
        o += g.ts('B', 'p3')
        o += [prio(g.o.prioV), salu('s_sub_u32', sT0, sR2, sBASE), salu('s_add_u32', sT0, sT0, 8320 - ST01), valu('v_add_u32', vSW, sT0, vSW)]
        o += g.gluT(0)
        o += g.convread(0)
        o += g.gluT(1)
        o += g.conv() + g.convread(1)
        o += g.silu(0)
        o.append(barrier(drain_lgkm=True, note='bar7'))
        o += g.ts('B', 'b7')
        o += [salu('s_mul_i32', sT0, sU, 2048 - R2STR), salu('s_add_u32', sT0, sT0, X2 - 8320), valu('v_add_u32', vSW, sT0, vSW)]
        o += g.conv()
        o += g.silu(0)
        o.append(barrier(drain_lgkm=True, note='bar8'))
        o += g.ts('B', 'end')
        return o + g.fin('B')

    def fin(g, role):
        o = []
        if g.o.ts:
            t = Tok()
            o.append(I('wait', 's_waitcnt vmcnt(0)'))
            o += [I('smem', f's_memrealtime {S(92, 2)}', wr=S(92, 2).regs(), tok=t), waitfor([t])]
            o.append(valu('v_mov_b32', V(1), 0))
            for n in range(1, len(g.nts[role]) + 1):
                o += [salu('s_sub_u32', sT0, S(sTS + 2 * n), S(sTS)), raw(f'v_writelane_b32 v1, {sT0}, {n-1}', 'valu', rd=sT0.regs(), wr=[('v', 1)])]
            o += [raw(f'v_writelane_b32 v1, s90, {NTS-2}', 'valu', wr=[('v', 1)]), raw(f'v_writelane_b32 v1, s92, {NTS-1}', 'valu', wr=[('v', 1)])]
            o += [salu('s_lshl_b32', sT0, S(2), 3), salu('s_add_u32', sT0, sT0, sw), salu('s_mul_i32', sT0, sT0, NTS * 4),
                  valu('v_and_b32', V(2), 63, V(1)), raw('v_mbcnt_lo_u32_b32 v2, -1, 0', 'valu', wr=[('v', 2)]),
                  raw('v_mbcnt_hi_u32_b32 v2, -1, v2', 'valu', rd=[('v', 2)], wr=[('v', 2)]),
                  valu('v_lshlrev_b32', V(2), 2, V(2)), raw(f's_mov_b64 exec, {hex((1 << NTS) - 1)}'), raw('s_nop 4'),
                  vstore('buffer_store_dword', V(1), V(2), sWS, sT0)]
        if g.o.dbg:
            t = Tok(); t2 = Tok()
            o.append(I('wait', 's_waitcnt vmcnt(0)'))
            o += [I('smem', f's_memrealtime {S(92, 2)}', wr=S(92, 2).regs(), tok=t), I('smem', f's_memtime {S(46, 2)}', wr=S(46, 2).regs(), tok=t2),
                  I('mark', '', drain_lgkm=True)]
            o += [salu('s_sub_u32', S(46), S(46), S(44)), salu('s_sub_u32', S(47), S(92), S(90)), salu('s_sub_u32', S(90), 0, S(90)),
                  valu('v_mov_b32', V(1), 0)]
            for n, r in enumerate((90, 92, 46, 47)):
                o.append(raw(f'v_writelane_b32 v1, s{r}, {n}', 'valu', rd=[('s', r)], wr=[('v', 1)]))
            o += [raw('v_mbcnt_lo_u32_b32 v2, -1, 0', 'valu', wr=[('v', 2)]),
                  raw('v_mbcnt_hi_u32_b32 v2, -1, v2', 'valu', rd=[('v', 2)], wr=[('v', 2)]),
                  valu('v_lshlrev_b32', V(2), 2, V(2)), raw('s_mov_b64 exec, 15'), raw('s_nop 4'),
                  raw('buffer_atomic_umax v1, v2, s[24:27], 0 offen')]
        o.append(raw('s_endpgm'))
        return o

    def build(g):
        c = g.common()
        a, b = g.streamA(), g.streamB()
        nb = lambda x: sum(i.kind == 'bar' for i in x)
        assert nb(a) == nb(b), (nb(a), nb(b))
        fa, fb = finalize(c + a), finalize(c + b)
        n = len(finalize(c))
        assert [i.text for i in fa[:n]] == [i.text for i in fb[:n]]
        hdr = open('standalone__conformer_conv_module__speech.s.ref').read().split('; Override launch')[0]
        t = hdr + '; @launch grid=(250,1,1) block=(512,1,1) lds=163840\n'
        t += f'.amdgcn_target "amdgcn-amd-amdhsa--gfx950"\n.text\n.globl {K}\n.p2align 8\n.type {K},@function\n{K}:\n'
        t += text(fa) + 'L_B:\n' + text(fb[n:]) + 'L_END:\n    s_endpgm\n'
        t += f'''.section .rodata,"a"
.p2align 6
.amdhsa_kernel {K}
  .amdhsa_next_free_vgpr 256
  .amdhsa_next_free_sgpr 102
  .amdhsa_accum_offset 128
  .amdhsa_group_segment_fixed_size 0
  .amdhsa_kernarg_size 56
  .amdhsa_user_sgpr_count 2
  .amdhsa_user_sgpr_kernarg_segment_ptr 1
  .amdhsa_system_sgpr_workgroup_id_x 1
.end_amdhsa_kernel
'''
        g.fa, g.fb = fa, fb
        return t

def parse_opts(args):
    kw = {}
    for a in args:
        k, v = a.split('=')
        try: v = eval(v)
        except Exception: pass
        kw[k] = v
    return kw

if __name__ == '__main__':
    out = sys.argv[1]
    g = Gen(**parse_opts(sys.argv[2:]))
    t = g.build(); open(out, 'w').write(t)
    from collections import Counter
    for nm, f in (('A', g.fa), ('B', g.fb)):
        c = Counter(i.kind for i in f)
        print(nm, len(f), dict(c), g.nts.get(nm))
```

```python
import sys
from ir import *

K = 'standalone__conformer_conv_module__speech_kernel'
X2, WAREA, WSTR, R2STR = 41600, 74880, 11120, 10400
DWOFF, HT, ST01 = 8320, 32, 5696
NTS = 16

sX, sW1, sW2, sDW, sOUT, sWS = S(4, 4), S(8, 4), S(12, 4), S(16, 4), S(20, 4), S(24, 4)
sw, sBASE, sSO, sROW, sC1, sC2, sR2, sT0, sT1, sXS, sXL, sU, sSTG = [S(28 + i) for i in range(13)]
sTS = 44

accH = V(0, 16)
accA = [V(16, 16), V(48, 16)]
accB = [V(32, 16), V(64, 16)]
FR = [V(80 + 4 * i, 4) for i in range(4)]
XHF, W16 = V(96, 4), [V(100, 4), V(104, 4)]
TZ = [V(108, 10), V(96, 10)]
vXH, vWT16, vW1V, vWT32, vTG0, vHWH0, vP0, vP1 = [V(108 + i) for i in range(8)]
vTG, vHWH = V(95), V(94)
vXA, vHW, vHR, vSW, vW2V, vW2T, vR0, vR1, vR2, vOW = [V(118 + i) for i in range(10)]
vOR, vOV = V(106), V(107)
CB = [[V(16, 4), V(20, 4), V(24, 4)], [V(28, 4), V(40, 4), V(44, 4)]]
TMP = V(32, 8)

def W1F(s, ab): return A(8 * s + 4 * ab, 4)

class Opt(dict):
    __getattr__ = dict.get

DEF = Opt(x2mode='B_start', w2i0=12, w2r=2.0, ts=False, prioV=2, prioA1=1, stflags=' sc0 sc1 nt', xflags=' nt')

class Gen:
    def __init__(g, **kw):
        g.o = Opt(DEF); g.o.update(kw)
        g.nts = {}

    def ts(g, role, name):
        if not g.o.ts: return []
        k = g.nts.setdefault(role, [])
        k.append(name); n = len(k)
        assert n <= NTS - 3
        t = Tok()
        return [I('smem', f's_memtime {S(sTS + 2 * n, 2)}', wr=S(sTS + 2 * n, 2).regs(), tok=t), waitfor([t])]

    def fields(g, names, tmp0):
        spec = dict(l=(0, 6), b01=(0, 2), b0=(0, 1), b1=(1, 1), b2=(2, 1), b3=(3, 1), b4=(4, 1), b5=(5, 1), b23=(2, 2),
                    b234=(2, 3), b25=(2, 4), b03=(0, 4), b04=(0, 5), b02=(0, 3), b45=(4, 2), b35=(3, 3), b34=(3, 2))
        ins, m = [], {}
        for i, n in enumerate(names):
            r = V(tmp0 + i); sh, nb = spec[n]
            ins.append(valu('v_bfe_u32', r, V(0), sh, nb)); m[n] = r
        return ins, m

    def lin(g, dst, terms, base):
        ins = []; cur = None
        for r, mul in terms:
            p2 = mul & (mul - 1) == 0
            if cur is None:
                if p2: ins.append(valu('v_lshlrev_b32', dst, mul.bit_length() - 1, r))
                else: ins.append(valu('v_mul_u32_u24', dst, mul, r))
                cur = dst
            elif p2: ins.append(valu('v_lshl_add_u32', dst, r, mul.bit_length() - 1, dst))
            else:
                ins.append(salu('s_mov_b32', sT1, mul)); ins.append(valu('v_mad_u32_u24', dst, r, sT1, dst))
        for b in (base if isinstance(base, list) else [base]):
            if isinstance(b, Op) or b: ins.append(valu('v_add_u32', dst, b, dst))
        return ins

    def m0set(g, base, imm):
        if base is None: return salu('s_mov_b32', M0, imm)
        return salu('s_add_u32', M0, base, imm) if imm else salu('s_mov_b32', M0, base)

    def dmaop(g, voff, srd, sbase, simm, lbase, limm, flags='', needs=()):
        ins = []
        if sbase is None and 0 <= simm <= 64: so = simm
        elif sbase is not None and simm == 0: so = sbase
        else:
            ins.append(salu('s_mov_b32', sSO, simm) if sbase is None else salu('s_add_u32', sSO, sbase, simm)); so = sSO
        ins.insert(0, g.m0set(lbase, limm))
        d = dma(voff, srd, so, flags=flags, needs=needs); ins.append(d)
        return ins, d.tok

    def common(g):
        o = []
        o.append(salu('s_cmp_ge_u32', None, S(2), 250))
        o.append(raw('s_cbranch_scc1 L_END'))
        loads = [(sX, 0), (sW1, 8), (sW2, 24), (sDW, 16), (sOUT, 32)] + ([(sWS, 48)] if g.o.ts else [(sWS, 40)] if g.o.dbg else [])
        for r, a in loads:
            o.append(I('smem', f's_load_dwordx2 {r[0:2]}, s[0:1], {a}', wr=r[0:2].regs(), tok=Tok()))
        if g.o.ts or g.o.dbg or g.o.spin:
            o.append(I('smem', f's_memrealtime {S(90, 2)}', wr=S(90, 2).regs(), tok=Tok()))
            o.append(I('smem', f's_memtime {S(sTS, 2)}', wr=S(sTS, 2).regs(), tok=Tok()))
        o.append(valu('v_lshrrev_b32', V(1), 6, V(0)))
        o.append(salu('s_cmp_ge_u32', None, S(2), 125))
        o.append(I('valu', f'v_readfirstlane_b32 {sw}, v1', rd=[('v', 1)], wr=sw.regs()))
        o.append(salu('s_cselect_b32', sT0, 125, 0))
        o.append(salu('s_cselect_b32', sT1, 8192000, 0))
        o.append(salu('s_sub_u32', sROW, S(2), sT0))
        o.append(salu('s_lshl_b32', sROW, sROW, 16))
        f, F = g.fields(['b234', 'b5', 'b01', 'b25'], 2)
        g.F0 = F
        o += f
        o += g.lin(V(6), [(F['b234'], 512), (F['b5'], 64), (F['b01'], 16)], 0)
        g.vXV = V(6)
        for r, n in ((sX, 8192000), (sW1, 262144), (sW2, 131072), (sDW, 7680), (sOUT, 65536)):
            o.append(salu('s_mov_b32', r[2], n)); o.append(salu('s_mov_b32', r[3], 0x20000))
        if g.o.ts or g.o.dbg:
            o.append(salu('s_mov_b32', sWS[2], 1 << 20 if g.o.ts else 256)); o.append(salu('s_mov_b32', sWS[3], 0x20000))
        o.append(salu('s_and_b32', sU, sw, 3))
        o.append(salu('s_mul_i32', sBASE, sw, WSTR))
        o.append(salu('s_add_u32', sBASE, sBASE, WAREA))
        o.append(salu('s_mul_i32', sR2, sU, R2STR))
        o.append(salu('s_lshl_b32', sXS, sU, 13))
        o.append(salu('s_add_u32', sXS, sXS, sROW))
        o.append(salu('s_lshr_b32', sT0, sU, 1))
        o.append(salu('s_mul_i32', sXL, sT0, 12 * 1040))
        o.append(salu('s_mul_i32', sT0, sU, 2 * 1040))
        o.append(salu('s_add_u32', sXL, sXL, sT0))
        o.append(I('mark', '', needs=[], drain_lgkm=True))
        o.append(salu('s_add_u32', sX[0], sX[0], sT1))
        o.append(salu('s_addc_u32', sX[1], sX[1], 0))
        o.append(salu('s_add_u32', sT1, sT1, sROW))
        o.append(salu('s_add_u32', sOUT[0], sOUT[0], sT1))
        o.append(salu('s_addc_u32', sOUT[1], sOUT[1], 0))
        o.append(salu('s_cmp_ge_u32', None, sw, 4))
        o.append(raw('s_cbranch_scc1 L_B'))
        return o

    def w1ring(g, s, ab, needs=()):
        ins, t = g.dmaop(vW1V, sW1, None, s * 16384 + ab * 512, sBASE, ((2 * s + ab) % 8) * 1040, needs=needs)
        g.tW[(s, ab)] = t
        return ins

    def w1v(g):
        F = g.F0
        return [salu('s_lshl_b32', sT0, sw, 6)] + g.lin(vW1V, [(F['b25'], 1024), (F['b01'], 16)], sT0)

    def prefill(g):
        o = []
        for s, ab in ((0, 0), (1, 0), (0, 1), (1, 1), (2, 0), (3, 0), (2, 1), (3, 1)): o += g.w1ring(s, ab)
        return o

    def dwload(g):
        F = g.F0
        o = [salu('s_lshl_b32', sT0, sw, 6)] + g.lin(V(7), [(F['b25'], 512), (F['b01'], 16)], sT0)
        ins, g.tDW = g.dmaop(V(7), sDW, None, 0, sBASE, DWOFF + 256)
        return o + ins

    def x2load(g, mode):
        o = []; toks = []
        if mode == 'full':
            for q in range(4):
                for gr in range(2):
                    ins, t = g.dmaop(g.vXV2, sX, sXS, 72 * 512 + 4096 * gr + 128 * q, sXL, X2 + (4 * q + gr) * 1040, flags=g.o.xflags)
                    o.append(ins); toks.append(t)
        else:
            jj = 0 if mode == 'T2' else 1
            pre = [salu('s_lshl_b32', sT0, sU, 12), salu('s_add_u32', sT0, sT0, sROW), salu('s_mul_i32', sT1, sU, 1040)]
            for q in range(4):
                ins, t = g.dmaop(g.vXV2, sX, sT0, (72 + 32 * jj) * 512 + 128 * q, sT1, X2 + (16 * jj + 4 * q) * 1040, flags=g.o.xflags)
                o.append(pre + ins); pre = []; toks.append(t)
        return o, toks

    def addrs(g, role):
        F0 = g.F0
        f, F = g.fields(['b0', 'b1', 'b2', 'b3', 'b4', 'b23', 'b03', 'b04', 'b02', 'b45', 'b35', 'b34', 'l'], 8)
        F.update(F0)
        o = list(f)
        o += g.lin(vXA, [(F['b2'], 2080), (F['b4'], 1040), (F['b3'], 256), (F['b01'], 64), (F['b5'], 16)], 0)
        o += g.lin(vXH, [(F['b3'], 1040), (F['b02'], 64), (F['b4'], 32), (F['b5'], 16)], 0)
        o += g.lin(vR0, [(F['b5'], 512), (F['b23'], 64), (F['b01'], 8)], 0)
        o += g.lin(vWT16, [(F['b4'], 2080)], [vR0, sBASE])
        o += [valu('v_lshl_add_u32', vR0, F['b4'], 5, vR0)]
        o += [valu('v_add_u32', vWT32, sBASE, vR0)]
        c, t = V(24), V(25)
        o += [valu('v_bcnt_u32_b32', t, F['b234'], 0), valu('v_and_b32', t, 1, t)]
        o += g.lin(c, [(F['b5'], 2), (F['b34'], 4)], [t])
        o += [salu('s_add_u32', sT0, sBASE, DWOFF + 256 - 64), valu('v_lshlrev_b32', t, 6, F['b01']),
              valu('v_lshlrev_b32', vTG0, 1, c), valu('v_sub_u32', vTG0, vTG0, t), valu('v_add_u32', vTG0, sT0, vTG0)]
        o += [salu('s_add_u32', sT0, sBASE, HT)]
        o += g.lin(vHW, [(F['b04'], 176), (F['b5'], 32)], sT0)
        o += g.lin(vHWH0, [(F['b03'], 176), (F['b45'], 8)], sT0)
        o += g.lin(vHR, [(c, 176), (F['b01'], 16)], sBASE)
        o += [salu('s_add_u32', sT0, sBASE, ST01)]
        o += g.lin(vSW, [(c, 64), (F['b01'], 16)], sT0)
        o += [salu('s_add_u32', sT0, sBASE, DWOFF), valu('v_mov_b32', t, 0)]
        o += g.lin(c, [(F['l'], 4)], sT0)
        o += [ds_write('ds_write_b32', c, t, 0), ds_write('ds_write_b32', c, t, 1280)]
        if role == 'A':
            o += [salu('s_lshl_b32', sT0, sw, 7)]
            o += g.lin(vW2V, [(F['b25'], 512), (F['b01'], 16)], sT0)
            o += g.lin(vW2T, [(F['b5'], 512), (F['b23'], 64), (F['b0'], 32), (F['b4'], 16), (F['b1'], 8)], sR2)
            o += [valu('v_add_u32', vR1, WAREA + ST01, vR0), valu('v_add_u32', vR2, WAREA + ST01 + 4 * WSTR, vR0)]
            o += [salu('s_add_u32', sSTG, sR2, 4096 + 127), salu('s_and_b32', sSTG, sSTG, 0xffffff80)]
            o += [valu('v_lshlrev_b32', t, 1, F['b5']), valu('v_xor_b32', t, t, F['b02'])]
            o += g.lin(vOW, [(F['b04'], 128), (t, 16)], sSTG)
            o += g.lin(vP0, [(F['l'], 16)], sSTG)
            o += [valu('v_xor_b32', t, F['b02'], F['b35'])]
            o += g.lin(vP1, [(F['b35'], 512), (t, 16)], sT0)
        o += [salu('s_mov_b32', sC1, 0xbfb8aa3b), salu('s_mov_b32', sC2, 0xbf317218)]
        return o

    def xread(g, buf, j, s, base=0):
        o = (8 + 16 * j + 4 * (s // 4)) * 1040 + 512 * ((s % 4) // 2) + 32 * (s % 2) - base
        return ds_read('ds_read_b128', buf, vXA, o)
    def w32read(g, s, ab):
        sl = ((2 * s + ab) % 8) * 1040
        return [ds_read('ds_read_b64_tr_b16', W1F(s, ab)[2 * t:2 * t + 2], vWT32, sl + 256 * t, needs=[g.tW[(s, ab)]]) for t in range(2)]
    def w16read(g, s, ab, ch):
        sl = ((2 * s + ab) % 8) * 1040
        return [ds_read('ds_read_b64_tr_b16', W16[ch][2 * t:2 * t + 2], vWT16, sl + 32 * ch + 256 * t,
                        needs=[g.tW[(s, ab)], g.tW[(s + 1, ab)]]) for t in range(2)]
    def xhread(g, n):
        return ds_read('ds_read_b128', XHF, vXH, 2 * (n // 2) * 1040 + 512 * (n % 2))

    def p1(g, bars, extra):
        o = []
        def anext(n):
            s = 2 * n
            pre = bars.get(n // 2, []) if n % 2 == 0 else []
            wa0, wa1 = g.w32read(s, 0), None
            lo, hi = g.w16read(s, 0, 0), g.w16read(s, 0, 1)
            wa1 = g.w32read(s + 1, 0)
            g.rdA[n] = [i.tok for i in wa0 + lo + hi + wa1]
            return {6: pre + [g.xread(FR[0], 0, s)], 7: [g.xread(FR[1], 1, s)], 8: wa0 + lo, 9: [g.xhread(n)] + hi,
                    10: [g.xread(FR[2], 0, s + 1)] + wa1, 11: [g.xread(FR[3], 1, s + 1)]}
        g.rdA = {}
        nx = anext(0)
        o += nx[6] + nx[8][:2] + nx[7] + nx[9][:1] + nx[8][2:] + nx[9][1:] + nx[10] + nx[11]
        for n in range(8):
            s = 2 * n
            c = lambda r, first: 0 if first else r
            m = [mfma(32, accA[0], FR[0], W1F(s, 0), c(accA[0], n == 0)), mfma(32, accA[1], FR[1], W1F(s, 0), c(accA[1], n == 0)),
                 mfma(16, accH[0:4], XHF, W16[0], c(accH[0:4], n == 0)), mfma(16, accH[4:8], XHF, W16[1], c(accH[4:8], n == 0)),
                 mfma(32, accA[0], FR[2], W1F(s + 1, 0), accA[0]), mfma(32, accA[1], FR[3], W1F(s + 1, 0), accA[1]),
                 mfma(32, accB[0], FR[0], W1F(s, 1), c(accB[0], n == 0)), mfma(32, accB[1], FR[1], W1F(s, 1), c(accB[1], n == 0)),
                 mfma(16, accH[8:12], XHF, W16[0], c(accH[8:12], n == 0)), mfma(16, accH[12:16], XHF, W16[1], c(accH[12:16], n == 0)),
                 mfma(32, accB[0], FR[2], W1F(s + 1, 1), accB[0]), mfma(32, accB[1], FR[3], W1F(s + 1, 1), accB[1])]
            fl = []
            wb0, lo, hi, wb1 = g.w32read(s, 1), g.w16read(s, 1, 0), g.w16read(s, 1, 1), g.w32read(s + 1, 1)
            rdB = [i.tok for i in wb0 + lo + hi + wb1]
            if n < 6: fl.append((1, g.w1ring(s + 4, 0, g.rdA[n])))
            fl += [(2, wb0 + lo)]
            if n < 6: fl.append((2, g.w1ring(s + 5, 0)))
            fl += [(3, hi), (4, wb1)]
            if n < 7:
                nx = anext(n + 1)
                fl += [(k, nx[k]) for k in (6, 7, 8, 9, 10, 11)]
            if n < 6:
                fl.append((7, g.w1ring(s + 4, 1, rdB)))
                fl.append((8, g.w1ring(s + 5, 1)))
            for p in range(12):
                if (n, p) in extra: fl.append((p, extra[(n, p)]))
            o += interleave(m, fl)
        return o

    def p3(g, w2):
        m, fl = [], []
        bx = lambda s, j: FR[2 * (s % 2) + j]
        pre = [g.xread(bx(0, 0), 2, 0, X2), g.xread(bx(0, 1), 3, 0, X2)]
        for s in range(16):
            c = lambda r: 0 if s == 0 else r
            m += [mfma(32, accA[0], bx(s, 0), W1F(s, 0), c(accA[0])), mfma(32, accB[0], bx(s, 0), W1F(s, 1), c(accB[0])),
                  mfma(32, accB[1], bx(s, 1), W1F(s, 1), c(accB[1])), mfma(32, accA[1], bx(s, 1), W1F(s, 0), c(accA[1]))]
            if s < 15:
                fl.append((4 * s, [g.xread(bx(s + 1, 0), 2, s + 1, X2)]))
                fl.append((4 * s + 2, [g.xread(bx(s + 1, 1), 3, s + 1, X2)]))
        tail = []
        if w2:
            tk = {}
            def ld(k, needs=()):
                ins, tk[k] = g.dmaop(vW2V, sW2, None, (k // 2) * 8192 + (k % 2) * 64, sR2, (k % 8) * 1040, needs=needs)
                return ins
            for k in range(8): fl.append((k, ld(k)))
            ev = []
            for k in range(32):
                i = int(g.o.w2i0 + g.o.w2r * k)
                assert i >= 4 * (k // 2) + 3
                rd = [ds_read('ds_read_b64_tr_b16', W1F(k // 2, k % 2)[2 * t:2 * t + 2], vW2T, (k % 8) * 1040 + 256 * t, needs=[tk[k]]) for t in range(2)]
                ev.append((i, 0, rd))
                if k + 8 < 32: ev.append((i + 2, 1, ld(k + 8, [x.tok for x in rd])))
            ev.sort(key=lambda e: (e[0], e[1]))
            for i, _, ins in ev:
                if i <= 63: fl.append((i, ins))
                else: tail.append(ins)
        return pre, interleave(m, fl), tail

    def act(g, num, src, tmp, first, cst):
        o = []
        n = len(num)
        for i0 in range(0, n, 4):
            r = range(i0, min(i0 + 4, n))
            if first: o += [valu('v_mul_f32', tmp[i], sC1, src[i]) for i in r]
            o += [valu('v_exp_f32', tmp[i], tmp[i] if first else src[i]) for i in r]
            o += [valu('v_fma_f32', tmp[i], tmp[i], cst, cst) for i in r]
            o += [valu('v_rcp_f32', tmp[i], tmp[i]) for i in r]
            o += [valu('v_mul_f32', num[i], num[i], tmp[i]) for i in r]
            o.append(('grp', i0))
        return o
    def splice(g, o, after):
        out = []
        for x in o:
            if isinstance(x, tuple): out += after.get(x[1], [])
            else: out.append(x)
        return out

    def gluH(g):
        a = [accH[i] for i in range(8)]; b = [accH[8 + i] for i in range(8)]
        af = {}
        for ch in range(2):
            d = accH[8 + 2 * ch:10 + 2 * ch]
            af[4 * ch] = [valu('v_cvt_pk_bf16_f32', d[i], a[4 * ch + 2 * i], a[4 * ch + 2 * i + 1]) for i in range(2)] + \
                         [ds_write('ds_write_b64', vHWH, d, 2816 * ch)]
        return g.splice(g.act(a, b, b, True, sC2), af)

    def gluT(g, j):
        a = [accA[j][i] for i in range(16)]; b = [accB[j][i] for i in range(16)]
        af = {}
        for gi in range(4):
            af[4 * gi] = [valu('v_cvt_pk_bf16_f32', b[2 * gi + i], a[4 * gi + 2 * i], a[4 * gi + 2 * i + 1]) for i in range(2)]
            if gi % 2: af[4 * gi].append(ds_write('ds_write_b128', vHW, accB[j][4 * (gi // 2):4 * (gi // 2) + 4], 32 + 64 * j + 16 * (gi // 2)))
        return g.splice(g.act(a, b, b, True, sC2), af)

    def toeplitz(g):
        rd, fix = [], []
        for cg in range(2):
            for r in range(10):
                s, h = r // 2, r % 2
                t = V(80 + (10 * cg + r) % 14)
                rd.append(ds_read('ds_read_u16', TZ[cg][r], vTG, (4 * s + 2 * h) * 64 + 32 * cg, needs=[g.tDW]))
                rd.append(ds_read('ds_read_u16_d16_hi', t, vTG, (4 * s + 2 * h + 1) * 64 + 32 * cg))
                fix.append(valu('v_or_b32', TZ[cg][r], TZ[cg][r], t))
        return rd, fix

    def convread(g, jp):
        return [ds_read('ds_read_b128', CB[cg][e], vHR, 32 + 2816 * cg + (4 * jp + e) * 16) for e in range(3) for cg in range(2)]
    def conv(g):
        o = []
        for s in range(5):
            for cg in range(2):
                for q in range(2):
                    gi = q + s; d = accH[8 * cg + 4 * q:8 * cg + 4 * q + 4]
                    o.append(mfma(4, d, TZ[cg][2 * s:2 * s + 2], CB[cg][gi // 2][2 * (gi % 2):2 * (gi % 2) + 2], 0 if s == 0 else d))
        return o
    def carry(g):
        return [ds_write('ds_write_b128', vHR, CB[cg][2], 2816 * cg) for cg in range(2)]
    def silu(g, imm):
        x = [accH[i] for i in range(16)]; t = [TMP[i % 8] for i in range(16)]
        af = {}
        for gi in range(4):
            cg = gi // 2
            af[4 * gi] = [valu('v_cvt_pk_bf16_f32', x[8 * cg + 2 * (gi % 2) + i], x[4 * gi + 2 * i], x[4 * gi + 2 * i + 1]) for i in range(2)]
            if gi % 2: af[4 * gi].append(ds_write('ds_write_b128', vSW, accH[8 * cg:8 * cg + 4], imm + 1024 * cg))
        return g.splice(g.act(x, x, t, False, sC1), af)

    def v1(g, role):
        o = [prio(g.o.prioV), valu('v_mov_b32', vTG, vTG0), valu('v_mov_b32', vHWH, vHWH0)]
        if role == 'A': o += [valu('v_mov_b32', vOR, vP0), valu('v_mov_b32', vOV, vP1)]
        rd, fix = g.toeplitz()
        n1 = 28
        main = g.gluH() + g.gluT(0)
        o += sprinkle(main, rd[:n1])
        o += fix[:n1 // 2]
        o += g.convread(0)
        o += sprinkle(g.gluT(1), rd[n1:])
        o += fix[n1 // 2:]
        o += g.ts(role, 'glu')
        o += g.conv() + g.convread(1)
        o += g.silu(0)
        o += g.conv() + g.carry()
        o += g.silu(2048)
        return o

    def sread(g, j, s):
        w, cg = s // 2, s % 2
        if j < 2: base, o = (vR1, WSTR * w + 2048 * j) if w < 4 else (vR2, WSTR * (w - 4) + 2048 * j)
        elif w < 4: base, o = vR0, R2STR * w + 2048 * (j - 2)
        elif j == 2: base, o = vR0, R2STR * (w - 4) + 8320
        else: base, o = vR0, X2 + 2048 * (w - 4)
        return [ds_read('ds_read_b64_tr_b16', FR[s % 4][2 * t:2 * t + 2], base, o + 1024 * cg + 256 * t) for t in range(2)]
    def g2acc(g, j): return [V(48, 16), V(64, 16)] if j % 2 == 0 else [V(16, 16), V(32, 16)]
    def g2(g, j, side=(), s0=2):
        acc = g.g2acc(j)
        pre = g.sread(j, 0) + g.sread(j, 1)
        m, fl = [], []
        for s in range(16):
            for mt in range(2): m.append(mfma(32, acc[mt], W1F(s, mt), FR[s % 4], 0 if s == 0 else acc[mt]))
            if s + 2 < 16: fl.append((2 * s, g.sread(j, s + 2)))
        for k, grp in enumerate(side): fl.append((s0 + k, grp))
        return pre, interleave(m, fl)
    def epilogue(g, j):
        acc = g.g2acc(j); RB = V(0, 16); gr = []
        tmp = V(96 + 0)
        for mt in range(2):
            for e in range(2):
                x = [valu('v_cvt_pk_bf16_f32', acc[mt][4 * e + i], acc[mt][8 * e + 2 * i], acc[mt][8 * e + 2 * i + 1]) for i in range(4)]
                k = 4 * mt + e
                if k:
                    x.append(valu('v_xor_b32', g.vOT, 16 * k, vOW)); ad = g.vOT
                else: ad = vOW
                x.append(ds_write('ds_write_b128', ad, acc[mt][4 * e:4 * e + 4], 0))
                gr.append(x)
        for p in range(4): gr.append([ds_read('ds_read_b128', RB[4 * p:4 * p + 4], vOR, 1024 * p)])
        gr.append([]); gr.append([])
        for p in range(4):
            gr.append([salu('s_mov_b32', sSO, (32 * j + 8 * p) * 512),
                       vstore('buffer_store_dwordx4', RB[4 * p:4 * p + 4], vOV, sOUT, sSO, flags=g.o.stflags)])
        return gr

    def streamA(g):
        g.tW = {}
        o = []
        o += [salu('s_lshl_b32', sT0, sw, 7), salu('s_add_u32', sT0, sT0, sROW), salu('s_sub_u32', sT0, sT0, 4096),
              valu('v_add_u32', V(7), sT0, g.vXV), salu('s_mul_i32', sT1, sw, 2080), valu('v_add_u32', V(8), 4096, V(7))]
        i0, tH0 = g.dmaop(V(7), sX, None, 0, sT1, 0, flags=g.o.xflags)
        i1, tH1 = g.dmaop(V(8), sX, None, 0, sT1, 1040, flags=g.o.xflags)
        o += i0 + i1 + g.w1v() + g.prefill() + g.dwload()
        g.vXV2 = V(116); o.append(valu('v_mov_b32', g.vXV2, g.vXV))
        o += g.addrs('A')
        o += g.ts('A', 'pro')
        o.append(prio(g.o.prioA1))
        bars = {q: [barrier([tH0, tH1] if q == 0 else [], note=f'bar{q+1}')] for q in range(4)}
        extra = {}; x2t = []
        if g.o.x2mode in ('A_late', 'split'):
            x2, x2t = g.x2load('full' if g.o.x2mode == 'A_late' else 'T3')
            pos = [(n, p) for n in (6, 7) for p in (0, 1, 5, 6, 7)]
            for k, ins in enumerate(x2): extra[pos[k]] = ins
        o += g.p1(bars, extra)
        o += g.ts('A', 'p1')
        o += g.v1('A')
        o += [valu('v_add_u32', vXA, X2, vXA)]
        o += g.ts('A', 'v1')
        o.append(barrier(x2t, drain_lgkm=True, note='bar5'))
        o.append(prio(0))
        o += g.ts('A', 'b5')
        pre, m, tail = g.p3(True)
        o += pre + m
        o += g.ts('A', 'p3')
        o += [prio(g.o.prioV), salu('s_sub_u32', sT0, sR2, sBASE), salu('s_sub_u32', sT0, sT0, ST01), valu('v_add_u32', vSW, sT0, vSW)]
        o += sprinkle(g.gluT(0), tail, per=1)
        o.append(barrier(note='bar6'))
        o += g.ts('A', 'b6')
        o += g.convread(0)
        o += g.gluT(1)
        o += g.conv() + g.convread(1)
        o += g.silu(0)
        o += g.conv()
        o += g.silu(2048)
        g.vOT = V(96)
        o.append(prio(0))
        o += g.ts('A', 'v2')
        side = []
        for j in range(4):
            if j >= 2: o.append(barrier(drain_lgkm=(j == 2), note=f'bar{5+j}'))
            pre, m = g.g2(j, side)
            o += pre + m
            side = g.epilogue(j)
            if j in (1, 2): o += g.ts('A', f'g{j}')
        for grp in side: o += grp
        for k in range(g.o.padm or 0): o.append(mfma(32, V(16 * (1 + k % 2), 16), A(0, 4), A(4, 4), 0))
        o += g.ts('A', 'end')
        return o + g.fin('A')

    def streamB(g):
        g.tW = {}
        o = []; tq = {}
        def xq(q):
            r = []; tq[q] = []
            for gr in range(2):
                ins, t = g.dmaop(g.vXV, sX, sXS, 8 * 512 + 4096 * gr + 128 * q, sXL, (8 + 4 * q + gr) * 1040, flags=g.o.xflags)
                r += ins; tq[q].append(t)
            return r
        o += xq(0)
        o += [salu('s_lshr_b32', sT0, S(2), 3), salu('s_and_b32', sT0, sT0, 31), salu('s_lshl_b32', sT0, sT0, 2), salu('s_add_u32', sT0, sT0, sU),
              salu('s_lshl_b32', sT1, sT0, 11), salu('s_lshl_b32', sT0, sT0, 10),
              valu('v_and_b32', V(8), 63, V(0)), valu('v_lshlrev_b32', V(9), 5, V(8)), valu('v_lshlrev_b32', V(8), 4, V(8)),
              vload('buffer_load_dword', V(126), V(9), sW1, sT1), vload('buffer_load_dword', V(127), V(8), sW2, sT0)]
        o += xq(1) + xq(2) + xq(3)
        o += g.w1v() + g.prefill() + g.dwload()
        g.vXV2 = g.vXV; x2t = []
        if g.o.x2mode in ('B_start', 'split'):
            x2, x2t = g.x2load('full' if g.o.x2mode == 'B_start' else 'T2')
            for ins in x2: o += ins
        o += g.addrs('B')
        o += g.ts('B', 'pro')
        for q in range(4): o.append(barrier(tq[q], note=f'bar{q+1}'))
        o += g.ts('B', 'b4')
        o += g.p1({}, {})
        o += g.ts('B', 'p1')
        o.append(barrier(x2t, drain_lgkm=True, note='bar5'))
        o += g.ts('B', 'b5')
        o += g.v1('B')
        o += [valu('v_add_u32', vXA, X2, vXA)]
        o += g.ts('B', 'v1')
        o.append(barrier(drain_lgkm=True, note='bar6'))
        o.append(prio(0))
        o += g.ts('B', 'b6')
        pre, m, _ = g.p3(False)
        o += pre + m
        o += g.ts('B', 'p3')
        o += [prio(g.o.prioV), salu('s_sub_u32', sT0, sR2, sBASE), salu('s_add_u32', sT0, sT0, 8320 - ST01), valu('v_add_u32', vSW, sT0, vSW)]
        o += g.gluT(0)
        o += g.convread(0)
        o += g.gluT(1)
        o += g.conv() + g.convread(1)
        o += g.silu(0)
        o.append(barrier(drain_lgkm=True, note='bar7'))
        o += g.ts('B', 'b7')
        o += [salu('s_mul_i32', sT0, sU, 2048 - R2STR), salu('s_add_u32', sT0, sT0, X2 - 8320), valu('v_add_u32', vSW, sT0, vSW)]
        o += g.conv()
        o += g.silu(0)
        o.append(barrier(drain_lgkm=True, note='bar8'))
        o += g.ts('B', 'end')
        return o + g.fin('B')

    def fin(g, role):
        o = []
        if g.o.ts:
            t = Tok()
            o.append(I('wait', 's_waitcnt vmcnt(0)'))
            o += [I('smem', f's_memrealtime {S(92, 2)}', wr=S(92, 2).regs(), tok=t), waitfor([t])]
            o.append(valu('v_mov_b32', V(1), 0))
            for n in range(1, len(g.nts[role]) + 1):
                o += [salu('s_sub_u32', sT0, S(sTS + 2 * n), S(sTS)), raw(f'v_writelane_b32 v1, {sT0}, {n-1}', 'valu', rd=sT0.regs(), wr=[('v', 1)])]
            o += [raw(f'v_writelane_b32 v1, s90, {NTS-2}', 'valu', wr=[('v', 1)]), raw(f'v_writelane_b32 v1, s92, {NTS-1}', 'valu', wr=[('v', 1)])]
            o += [salu('s_lshl_b32', sT0, S(2), 3), salu('s_add_u32', sT0, sT0, sw), salu('s_mul_i32', sT0, sT0, NTS * 4),
                  valu('v_and_b32', V(2), 63, V(1)), raw('v_mbcnt_lo_u32_b32 v2, -1, 0', 'valu', wr=[('v', 2)]),
                  raw('v_mbcnt_hi_u32_b32 v2, -1, v2', 'valu', rd=[('v', 2)], wr=[('v', 2)]),
                  valu('v_lshlrev_b32', V(2), 2, V(2)), raw(f's_mov_b64 exec, {hex((1 << NTS) - 1)}'), raw('s_nop 4'),
                  vstore('buffer_store_dword', V(1), V(2), sWS, sT0)]
        if g.o.spin:
            o += [I('wait', 's_waitcnt vmcnt(0) lgkmcnt(0)'), raw(f'L_SPIN{role}:'), raw('s_memrealtime s[92:93]'), raw('s_waitcnt lgkmcnt(0)'),
                  raw('s_sub_u32 s94, s92, s90'), raw(f's_cmp_lt_u32 s94, {g.o.spin}'), raw(f's_cbranch_scc1 L_SPIN{role}')]
        if g.o.dbg:
            t = Tok(); t2 = Tok()
            o.append(I('wait', 's_waitcnt vmcnt(0)'))
            o += [I('smem', f's_memrealtime {S(92, 2)}', wr=S(92, 2).regs(), tok=t), I('smem', f's_memtime {S(46, 2)}', wr=S(46, 2).regs(), tok=t2),
                  I('mark', '', drain_lgkm=True)]
            o += [salu('s_sub_u32', S(46), S(46), S(44)), salu('s_sub_u32', S(47), S(92), S(90)), salu('s_sub_u32', S(90), 0, S(90)),
                  valu('v_mov_b32', V(1), 0)]
            for n, r in enumerate((90, 92, 46, 47)):
                o.append(raw(f'v_writelane_b32 v1, s{r}, {n}', 'valu', rd=[('s', r)], wr=[('v', 1)]))
            o += [raw('v_mbcnt_lo_u32_b32 v2, -1, 0', 'valu', wr=[('v', 2)]),
                  raw('v_mbcnt_hi_u32_b32 v2, -1, v2', 'valu', rd=[('v', 2)], wr=[('v', 2)]),
                  valu('v_lshlrev_b32', V(2), 2, V(2)), raw('s_mov_b64 exec, 15'), raw('s_nop 4'),
                  raw('buffer_atomic_umax v1, v2, s[24:27], 0 offen')]
        o.append(raw('s_endpgm'))
        return o

    def build(g):
        c = g.common()
        a, b = g.streamA(), g.streamB()
        nb = lambda x: sum(i.kind == 'bar' for i in x)
        assert nb(a) == nb(b), (nb(a), nb(b))
        fa, fb = finalize(c + a), finalize(c + b)
        n = len(finalize(c))
        assert [i.text for i in fa[:n]] == [i.text for i in fb[:n]]
        hdr = open('standalone__conformer_conv_module__speech.s.ref').read().split('; Override launch')[0]
        t = hdr + '; @launch grid=(250,1,1) block=(512,1,1) lds=163840\n'
        t += f'.amdgcn_target "amdgcn-amd-amdhsa--gfx950"\n.text\n.globl {K}\n.p2align 8\n.type {K},@function\n{K}:\n'
        t += text(fa) + 'L_B:\n' + text(fb[n:]) + 'L_END:\n    s_endpgm\n'
        t += f'''.section .rodata,"a"
.p2align 6
.amdhsa_kernel {K}
  .amdhsa_next_free_vgpr 256
  .amdhsa_next_free_sgpr 102
  .amdhsa_accum_offset 128
  .amdhsa_group_segment_fixed_size 0
  .amdhsa_kernarg_size 56
  .amdhsa_user_sgpr_count 2
  .amdhsa_user_sgpr_kernarg_segment_ptr 1
  .amdhsa_system_sgpr_workgroup_id_x 1
.end_amdhsa_kernel
'''
        g.fa, g.fb = fa, fb
        return t

def parse_opts(args):
    kw = {}
    for a in args:
        k, v = a.split('=')
        try: v = eval(v)
        except Exception: pass
        kw[k] = v
    return kw

if __name__ == '__main__':
    out = sys.argv[1]
    g = Gen(**parse_opts(sys.argv[2:]))
    t = g.build(); open(out, 'w').write(t)
    from collections import Counter
    for nm, f in (('A', g.fa), ('B', g.fb)):
        c = Counter(i.kind for i in f)
        print(nm, len(f), dict(c), g.nts.get(nm))
```

```python
import re

def R(kind, n, cnt=1):
    return [(kind, n + i) for i in range(cnt)]

def rt(kind, n, cnt=1):
    return f'{kind}{n}' if cnt == 1 else f'{kind}[{n}:{n+cnt-1}]'

class Op:
    def __init__(s, kind, n, cnt=1):
        s.kind, s.n, s.cnt = kind, n, cnt
    def __str__(s): return rt(s.kind, s.n, s.cnt)
    def regs(s): return R(s.kind, s.n, s.cnt)
    def __getitem__(s, i):
        if isinstance(i, slice):
            a = i.start or 0; b = s.cnt if i.stop is None else i.stop
            return Op(s.kind, s.n + a, b - a)
        return Op(s.kind, s.n + i, 1)

def V(n, c=1): return Op('v', n, c)
def A(n, c=1): return Op('a', n, c)
def S(n, c=1): return Op('s', n, c)
M0 = Op('m', 0)
M0.__class__ = type('M0op', (Op,), {'__str__': lambda s: 'm0'})

def lit(x):
    if isinstance(x, Op): return str(x)
    if isinstance(x, str): return x
    if isinstance(x, int):
        if -16 <= x <= 64: return str(x)
        return hex(x & 0xffffffff)
    raise ValueError(x)

def regs_of(x):
    return x.regs() if isinstance(x, Op) else []

class I:
    def __init__(s, kind, text, rd=(), wr=(), **kw):
        s.kind, s.text = kind, text
        s.rd, s.wr = list(rd), list(wr)
        s.tok = kw.get('tok')
        s.needs = list(kw.get('needs', ()))
        s.srcc = kw.get('srcc', [])
        s.passes = kw.get('passes', 0)
        s.wide = kw.get('wide', [])
        s.note = kw.get('note', '')
        s.drain_lgkm = kw.get('drain_lgkm', False)
    def __repr__(s): return s.text

class Tok:
    n = 0
    def __init__(s, name=''):
        Tok.n += 1; s.name = name or f't{Tok.n}'
    def __repr__(s): return s.name

TRANS = {'v_exp_f32', 'v_rcp_f32', 'v_log_f32', 'v_rsq_f32'}

def valu(op, dst, *src):
    rd = [r for x in src for r in regs_of(x)]
    kind = 'trans' if op in TRANS else 'valu'
    return I(kind, f'{op} {dst}, ' + ', '.join(lit(x) for x in src), rd=rd, wr=dst.regs())

def salu(op, dst, *src):
    rd = [r for x in src for r in regs_of(x)]
    wr = dst.regs() if dst is not None else []
    if op in ('s_addc_u32', 's_cselect_b32', 's_subb_u32'): rd.append(('scc', 0))
    if op in ('s_add_u32', 's_addc_u32', 's_sub_u32', 's_and_b32', 's_lshl_b32', 's_lshr_b32', 's_or_b32') or op.startswith('s_cmp'):
        wr.append(('scc', 0))
    ops = ([str(dst)] if dst is not None else []) + [lit(x) for x in src]
    return I('salu', f'{op} ' + ', '.join(ops), rd=rd, wr=wr)

MF = {32: ('v_mfma_f32_32x32x16_bf16', 8), 16: ('v_mfma_f32_16x16x32_bf16', 4), 4: ('v_mfma_f32_4x4x4_16b_bf16', 2)}
def mfma(sz, d, a, b, c):
    op, p = MF[sz]
    rd = a.regs() + b.regs() + regs_of(c)
    return I('mfma', f'{op} {d}, {a}, {b}, {lit(c)}', rd=rd, wr=d.regs(), srcc=regs_of(c), passes=p)

def off(o):
    return f' offset:{o}' if o else ''

def ds_read(op, dst, addr, o=0, needs=(), tok=None):
    assert 0 <= o < 65536, o
    return I('dsr', f'{op} {dst}, {addr}{off(o)}', rd=addr.regs(), wr=dst.regs(), needs=needs, tok=tok or Tok())

def ds_write(op, addr, src, o=0, needs=(), tok=None):
    assert 0 <= o < 65536, o
    return I('dsw', f'{op} {addr}, {src}{off(o)}', rd=addr.regs() + src.regs(), needs=needs, tok=tok or Tok(),
             wide=src.regs() if src.cnt > 2 else [])

def dma(voff, srd, soff, o=0, flags='', needs=(), tok=None):
    assert 0 <= o < 4096
    return I('dma', f'buffer_load_dwordx4 {voff}, {srd}, {lit(soff)} offen{off(o)}{flags} lds',
             rd=voff.regs() + srd.regs() + regs_of(soff) + [('m', 0)], needs=needs, tok=tok or Tok())

def vload(op, dst, voff, srd, soff, o=0, flags='', tok=None):
    return I('vld', f'{op} {dst}, {voff}, {srd}, {lit(soff)} offen{off(o)}{flags}',
             rd=voff.regs() + srd.regs() + regs_of(soff), wr=dst.regs(), tok=tok or Tok())

def vstore(op, src, voff, srd, soff, o=0, flags='', tok=None):
    return I('vst', f'{op} {src}, {voff}, {srd}, {lit(soff)} offen{off(o)}{flags}',
             rd=src.regs() + voff.regs() + srd.regs() + regs_of(soff), tok=tok or Tok(),
             wide=src.regs() if src.cnt > 2 else [])

def barrier(needs=(), drain_lgkm=False, note=''):
    return I('bar', 's_barrier', needs=needs, drain_lgkm=drain_lgkm, note=note)
def waitfor(needs):
    return I('mark', '', needs=needs)
def raw(text, kind='misc', rd=(), wr=()):
    return I(kind, text, rd=rd, wr=wr)
def prio(n): return I('misc', f's_setprio {n}')
def comment(t): return I('mark', f'; {t}')

def cost(i):
    if i.kind == 'mark' or not i.text: return 0
    if i.kind in ('mfma', 'trans'): return 8
    if i.kind == 'nop': return 4 * (int(i.text.split()[1]) + 1)
    return 4

class Clock:
    def __init__(s): s.t = 0; s.mf = 0
    def step(s, i):
        if i.kind == 'mfma':
            s.t = max(s.t, s.mf); s.mf = s.t + 4 * i.passes
        t = s.t; s.t += cost(i)
        return t

SAFE = 112

def add_waits(ins, safe=None):
    safe = SAFE if safe is None else safe
    out = []; ck = Clock()
    lg, vm = [], []
    for i in ins:
        touched = set(i.rd) | set(i.wr)
        need_l = need_v = -1
        for k, o in enumerate(lg):
            if (set(o.wr) & touched) or (o.tok in i.needs): need_l = k
        for k, o in enumerate(vm):
            if (set(o.wr) & touched) or (o.tok in i.needs): need_v = k
        if i.drain_lgkm and lg: need_l = len(lg) - 1
        if i.kind in ('dsr',):
            need_l2 = -1
            for k, o in enumerate(lg):
                if (set(o.wr) & set(i.rd)) or (o.tok in i.needs): need_l2 = k
            need_l = need_l2
        parts = []
        if need_v >= 0:
            n = min(len(vm) - 1 - need_v, 63)
            parts.append(f'vmcnt({n})'); vm = vm[len(vm) - n:] if n else []
        if need_l >= 0:
            now = max(ck.t, ck.mf) if i.kind == 'mfma' else ck.t
            while need_l + 1 < len(lg) and lg[need_l + 1].t0 + safe <= now: need_l += 1
            n = min(len(lg) - 1 - need_l, 15)
            parts.append(f'lgkmcnt({n})'); lg = lg[len(lg) - n:] if n else []
        if parts:
            w = I('wait', 's_waitcnt ' + ' '.join(parts)); ck.step(w); out.append(w)
        i.t0 = ck.step(i)
        out.append(i)
        if i.kind in ('dsr', 'dsw'): lg.append(i)
        if i.kind in ('dma', 'vld', 'vst'): vm.append(i)
        if i.kind == 'smem': lg.append(i)
    return out

def estimate(ins):
    ck = Clock(); r = []
    for i in ins:
        t = ck.step(i)
        if i.kind == 'bar' or 's_memtime' in i.text: r.append((i.note or 'ts', t))
    r.append(('end', ck.t))
    return r

def add_nops(ins):
    out = []
    D_RW = {2: 5, 4: 8, 8: 12}
    C_OVL = {2: 4, 4: 6, 8: 10}
    C_WAR = {2: 1, 4: 3, 8: 7}
    for i in ins:
        if i.kind == 'mark':
            out.append(i); continue
        need = 0
        dist = 0
        rd, wr = set(i.rd), set(i.wr)
        isvalu = i.kind in ('valu', 'trans')
        ismem = i.kind in ('dsr', 'dsw', 'dma', 'vld', 'vst')
        for p in reversed(out):
            if p.kind == 'mark': continue
            if dist >= 20: break
            pw = set(p.wr)
            req = 0
            if p.kind in ('valu', 'trans'):
                if i.kind == 'mfma' and (pw & rd): req = max(req, 2)
                if p.kind == 'trans' and i.kind == 'valu' and (pw & rd): req = max(req, 1)
                if i.text.startswith('v_readfirstlane') and (pw & rd): req = max(req, 1)
                sw = {r for r in pw if r[0] == 's'}
                if sw & rd:
                    if ismem: req = max(req, 5)
                    if isvalu: req = max(req, 2)
            if p.kind == 'salu' and ('m', 0) in pw and i.kind == 'dma': req = max(req, 1)
            if p.kind == 'mfma':
                if i.kind == 'mfma':
                    c = set(i.srcc)
                    ab = rd - c if not c else set(i.rd[:len(i.rd) - len(i.srcc)])
                    if pw & ab: req = max(req, D_RW[p.passes])
                    if pw & c:
                        if p.wr == i.srcc and p.passes == i.passes: req = max(req, 2 if p.passes == 2 else 0)
                        else: req = max(req, C_OVL[p.passes])
                    elif pw & wr:
                        req = max(req, C_OVL[p.passes])
                elif (isvalu or ismem) and (pw & (rd | wr)):
                    req = max(req, D_RW[p.passes])
                if (isvalu or ismem) and (set(p.srcc) & wr): req = max(req, C_WAR[p.passes])
            if p.wide and (isvalu or i.kind in ('mfma', 'dsr', 'vld')) and (set(p.wide) & wr): req = max(req, 2)
            need = max(need, req - dist)
            dist += 1
            if p.text.startswith('s_nop'): dist += int(p.text.split()[1])
        while need > 0:
            n = min(need, 8)
            out.append(I('nop', f's_nop {n-1}')); need -= n
        out.append(i)
    return out

def interleave(main, fillers):
    by = {}
    for pos, g in fillers:
        pos = min(pos, len(main) - 1)
        by.setdefault(pos, []).extend(g)
    out = list(by.get(-1, []))
    for k, m in enumerate(main):
        out.append(m); out.extend(by.get(k, []))
    return out

def sprinkle(main, side, start=0, pred=lambda i: i.kind == 'trans', per=1):
    side = list(side); out = []
    for k, m in enumerate(main):
        out.append(m)
        if k >= start and pred(m):
            for _ in range(per):
                if side:
                    g = side.pop(0); out.extend(g if isinstance(g, list) else [g])
    for g in side: out.extend(g if isinstance(g, list) else [g])
    return out

def finalize(ins):
    return add_nops(add_waits(ins))

def text(ins):
    return ''.join(('    ' + i.text + (f'   ; {i.note}' if i.note else '') + '\n') for i in ins if i.text)
```

```python
import sys, ast
from ir import *

K = 'standalone__conformer_conv_module__speech_kernel'
X2, WAREA, WSTR, R2STR = 41600, 74880, 11120, 10400
DWOFF, DWT, HT, ST01 = 8320, 9360, 32, 5696
NTS = 24

sX, sW1, sW2, sDW, sOUT, sWS = S(4, 4), S(8, 4), S(12, 4), S(16, 4), S(20, 4), S(24, 4)
sw, sBASE, sSO, sROW, sC1, sC2, sR2, sT0, sT1, sXS, sXL, sU, sSTG = [S(28 + i) for i in range(13)]
sTS = 44
sEXT, sAO, sAE, sD, sHL, sRF = S(41), S(42), S(43), S(94), S(95), S(96)
vXV2, vDW, vW1V2 = V(116), V(117), V(117)

accH = V(0, 16)
accA = [V(16, 16), V(48, 16)]
accB = [V(32, 16), V(64, 16)]
FR = [V(80 + 4 * i, 4) for i in range(4)]
XHF, W16 = V(96, 4), [V(100, 4), V(104, 4)]
TZ = [V(108, 10), V(96, 10)]
vXH, vWT16, vW1V, vWT32, vTG0, vHWH0, vP0, vP1 = [V(108 + i) for i in range(8)]
vTG, vHWH = V(95), V(94)
vXA, vHW, vHR, vSW, vW2V, vW2T, vR0, vR1, vR2, vOW = [V(118 + i) for i in range(10)]
vOR, vOV = V(106), V(107)
CB = [[V(16, 4), V(20, 4), V(24, 4)], [V(28, 4), V(40, 4), V(44, 4)]]
TMP = V(32, 8)

def W1F(s, ab): return A(8 * s + 4 * ab, 4)

class Opt(dict):
    __getattr__ = dict.get

DEF = Opt(morder='t0a hla t1a hha t0A t1A t0b hlb t1b hhb t0B t1B',
          layA='wb0||lob wb1|hib|||bar sw f0 wa0||f1 loa|xh|f2 hia|f3 wa1',
          layB='wb0 d0||lob wb1|hib|d1|sw wa0|f0 d2||f1 loa|xh|f2 hia|f3 wa1 d3',
          order='a', t2pos=(0, 1, 2, 3), t3pos=((5, 9), (5, 10), (6, 1), (6, 3)), b6='p3', w2i0=12, w2r=2.0, ts=False, prioV=0, prioM=1, prioC=3, prioA1=2, prioB1=1, stflags=' sc0 sc1 nt', xflags=' nt')

class Gen:
    def __init__(g, **kw):
        g.o = Opt(DEF); g.o.update(kw)
        g.nts = {}; g.rdB = {}

    def ts(g, role, name):
        if not g.o.ts: return []
        if g.o.ts is not True and name not in g.o.ts.split(',') and name.rstrip('0123456789') + '*' not in g.o.ts.split(','): return []
        k = g.nts.setdefault(role, [])
        k.append(name); n = len(k)
        assert n <= NTS - 2
        return [I('misc', f'{"s_memrealtime" if g.o.rt else "s_memtime"} {S(sTS + 2 * n, 2)}')]

    def fields(g, names, tmp0):
        spec = dict(l=(0, 6), b01=(0, 2), b0=(0, 1), b1=(1, 1), b2=(2, 1), b3=(3, 1), b4=(4, 1), b5=(5, 1), b23=(2, 2),
                    b234=(2, 3), b25=(2, 4), b03=(0, 4), b04=(0, 5), b02=(0, 3), b45=(4, 2), b35=(3, 3), b34=(3, 2))
        ins, m = [], {}
        for i, n in enumerate(names):
            r = V(tmp0 + i); sh, nb = spec[n]
            ins.append(valu('v_bfe_u32', r, V(0), sh, nb)); m[n] = r
        return ins, m

    def lin(g, dst, terms, base):
        ins = []; cur = None
        for r, mul in terms:
            p2 = mul & (mul - 1) == 0
            if cur is None:
                if p2: ins.append(valu('v_lshlrev_b32', dst, mul.bit_length() - 1, r))
                else: ins.append(valu('v_mul_u32_u24', dst, mul, r))
                cur = dst
            elif p2: ins.append(valu('v_lshl_add_u32', dst, r, mul.bit_length() - 1, dst))
            else:
                ins.append(salu('s_mov_b32', sT1, mul)); ins.append(valu('v_mad_u32_u24', dst, r, sT1, dst))
        for b in (base if isinstance(base, list) else [base]):
            if isinstance(b, Op) or b: ins.append(valu('v_add_u32', dst, b, dst))
        return ins

    def m0set(g, base, imm):
        if base is None: return salu('s_mov_b32', M0, imm)
        return salu('s_add_u32', M0, base, imm) if imm else salu('s_mov_b32', M0, base)

    def dmaop(g, voff, srd, sbase, simm, lbase, limm, flags='', needs=()):
        ins = []
        if sbase is None and 0 <= simm <= 64: so = simm
        elif sbase is not None and simm == 0: so = sbase
        else:
            ins.append(salu('s_mov_b32', sSO, simm) if sbase is None else salu('s_add_u32', sSO, sbase, simm)); so = sSO
        ins.insert(0, g.m0set(lbase, limm))
        d = dma(voff, srd, so, flags=flags, needs=needs); ins.append(d)
        return ins, d.tok

    def common(g):
        o = []
        o.append(salu('s_cmp_ge_u32', None, S(2), 250))
        o.append(raw('s_cbranch_scc1 L_END'))
        loads = [(sX, 0), (sW1, 8), (sW2, 24), (sDW, 16), (sOUT, 32)] + ([(sWS, 48)] if g.o.ts else [(sWS, 40)] if g.o.dbg else [])
        for r, a in loads:
            o.append(I('smem', f's_load_dwordx2 {r[0:2]}, s[0:1], {a}', wr=r[0:2].regs(), tok=Tok()))
        if g.o.ts or g.o.dbg or g.o.spin:
            o.append(I('smem', f's_memrealtime {S(90, 2)}', wr=S(90, 2).regs(), tok=Tok()))
            o.append(I('smem', f'{"s_memrealtime" if g.o.rt else "s_memtime"} {S(sTS, 2)}', wr=S(sTS, 2).regs(), tok=Tok()))
        o.append(valu('v_lshrrev_b32', V(1), 6, V(0)))
        o.append(salu('s_cmp_ge_u32', None, S(2), 125))
        o.append(I('valu', f'v_readfirstlane_b32 {sw}, v1', rd=[('v', 1)], wr=sw.regs()))
        o.append(salu('s_cselect_b32', sT0, 125, 0))
        o.append(salu('s_cselect_b32', sT1, 8192000, 0))
        o.append(salu('s_sub_u32', sROW, S(2), sT0))
        o.append(salu('s_lshl_b32', sROW, sROW, 16))
        f, F = g.fields(['b234', 'b5', 'b01', 'b25'], 2)
        g.F0 = F
        o += f
        o += g.lin(V(6), [(F['b234'], 512), (F['b5'], 64), (F['b01'], 16)], 0)
        g.vXV = V(6)
        for r, n in ((sX, 8192000), (sW1, 262144), (sW2, 131072), (sDW, 7680), (sOUT, 65536)):
            o.append(salu('s_mov_b32', r[2], n)); o.append(salu('s_mov_b32', r[3], 0x20000))
        if g.o.ts or g.o.dbg:
            o.append(salu('s_mov_b32', sWS[2], 1 << 20 if g.o.ts else 256)); o.append(salu('s_mov_b32', sWS[3], 0x20000))
        o.append(salu('s_and_b32', sU, sw, 3))
        o.append(salu('s_mul_i32', sBASE, sw, WSTR))
        o.append(salu('s_add_u32', sBASE, sBASE, WAREA))
        o.append(salu('s_mul_i32', sR2, sU, R2STR))
        o.append(salu('s_lshl_b32', sXS, sU, 13))
        o.append(salu('s_add_u32', sXS, sXS, sROW))
        o.append(salu('s_lshr_b32', sT0, sU, 1))
        o.append(salu('s_mul_i32', sXL, sT0, 12 * 1040))
        o.append(salu('s_mul_i32', sT0, sU, 2 * 1040))
        o.append(salu('s_add_u32', sXL, sXL, sT0))
        o.append(I('mark', '', needs=[], drain_lgkm=True))
        o.append(salu('s_add_u32', sX[0], sX[0], sT1))
        o.append(salu('s_addc_u32', sX[1], sX[1], 0))
        o.append(salu('s_add_u32', sT1, sT1, sROW))
        o.append(salu('s_add_u32', sOUT[0], sOUT[0], sT1))
        o.append(salu('s_addc_u32', sOUT[1], sOUT[1], 0))
        o.append(salu('s_cmp_lt_u32', None, sw, 4))
        o.append(raw('s_cbranch_scc1 L_A'))
        return o

    def region(g, role, n):
        if role == 'A': return (n // 2) % 2 == 0, 4 * (n % 2)
        return n % 3 == 2, 4 * (n % 3 % 2)
    def slot(g, role, s, ab):
        return (g.region(role, s // 2)[1] + 2 * (s % 2) + ab) * 1040
    def w1ring(g, role, s, ab, needs=()):
        ext = g.region(role, s // 2)[0]
        base = (sAE if ext else sAO) if role == 'A' else (sEXT if ext else sBASE)
        ins, t = g.dmaop(vW1V, sW1, None, s * 16384 + ab * 512 + (256 if role == 'B' else 0), base, g.slot(role, s, ab), needs=needs)
        g.tW[(role, s, ab)] = t
        return ins
    def wblk(g, role, n):
        o = []
        for s, ab in ((2 * n, 0), (2 * n + 1, 0), (2 * n, 1), (2 * n + 1, 1)): o += g.w1ring(role, s, ab)
        return o, [g.tW[(role, s, ab)] for s in (2 * n, 2 * n + 1) for ab in range(2)]

    def w1v(g):
        F = g.F0
        return [salu('s_lshl_b32', sT0, sU, 6)] + g.lin(vW1V, [(F['b25'], 1024), (F['b01'], 16)], sT0)

    def dwload(g):
        F = g.F0
        o = [salu('s_lshl_b32', sT0, sw, 6)] + g.lin(vDW, [(F['b25'], 512), (F['b01'], 16)], sT0)
        g.tDW = []
        for k in range(2):
            ins, t = g.dmaop(vDW, sDW, None, 256 * k, sBASE, DWOFF + 4 * WSTR * k); o += ins; g.tDW.append(t)
        return o
    def dwbuild(g, F):
        a, z, q = V(26), V(27), [V(32, 4), V(36, 4)]
        o = [salu('s_add_u32', sT0, sBASE, DWT)]
        o += g.lin(a, [(F['b04'], 40), (F['b5'], 16)], sT0)
        o += [valu('v_min_u32', z, 32, F['l']), salu('s_add_u32', sT0, sBASE, DWT - 8)] + g.lin(z, [(z, 40)], sT0)
        o += [valu('v_mov_b32', V(28), 0), valu('v_mov_b32', V(29), 0), salu('s_add_u32', sT0, sBASE, DWOFF), valu('v_add_u32', V(40), sT0, vR0)]
        for k in range(2):
            o.append(ds_write('ds_write_b64', z, V(28, 2), 4 * WSTR * k))
            o += [ds_read('ds_read_b64_tr_b16', q[k][2 * t:2 * t + 2], V(40), 4 * WSTR * k + 256 * t, needs=[g.tDW[k]]) for t in range(2)]
        for k in range(2):
            o += [ds_write('ds_write_b64', a, q[k][2 * t:2 * t + 2], 4 * WSTR * k + 8 * t) for t in range(2)]
        return o

    def x2load(g, jj, needs=()):
        o = []; toks = []
        for gr in range(4):
            ins, t = g.dmaop(vXV2, sX, sXS, (72 + 32 * jj) * 512 + 4096 * gr, sEXT, ((16 * jj - 16) + gr) * 1040, flags=g.o.xflags,
                             needs=needs if gr == 0 else ())
            o.append(ins); toks.append(t)
        return o, toks

    def addrs(g, role):
        F0 = g.F0
        f, F = g.fields(['b0', 'b1', 'b2', 'b3', 'b4', 'b23', 'b03', 'b04', 'b02', 'b45', 'b35', 'b34', 'l'], 8)
        F.update(F0)
        o = list(f)
        o += g.lin(vXA, [(F['b2'], 2080), (F['b4'], 1040), (F['b3'], 256), (F['b01'], 64), (F['b5'], 16)], 0)
        o += g.lin(vXH, [(F['b3'], 1040), (F['b02'], 64), (F['b4'], 32), (F['b5'], 16)], 0)
        o += g.lin(vR0, [(F['b5'], 512), (F['b23'], 64), (F['b01'], 8)], 0)
        o += g.lin(vWT16, [(F['b4'], 2080)], [vR0, sBASE])
        o += [valu('v_lshl_add_u32', vR0, F['b4'], 5, vR0)]
        if role == 'A':
            o += [salu('s_mul_i32', sEXT, sU, 8320), salu('s_add_u32', sEXT, sEXT, X2), salu('s_sub_u32', sD, sEXT, sBASE),
                  valu('v_add_u32', vWT16, sD, vWT16), valu('v_add_u32', vWT32, sEXT, vR0)]
        else:
            o += [salu('s_sub_u32', sD, sEXT, sBASE), valu('v_add_u32', vWT32, sBASE, vR0)]
        c, t = V(24), V(25)
        o += [valu('v_bcnt_u32_b32', t, F['b234'], 0), valu('v_and_b32', t, 1, t)]
        o += g.lin(c, [(F['b5'], 2), (F['b34'], 4)], [t])
        o += [salu('s_add_u32', sT0, sBASE, DWT - 2), valu('v_lshlrev_b32', t, 1, F['b01']), valu('v_sub_u32', t, sT0, t)]
        o += g.lin(vTG0, [(c, 40)], t)
        o += [salu('s_add_u32', sT0, sBASE, HT)]
        o += g.lin(vHW, [(F['b04'], 176), (F['b5'], 32)], sT0)
        o += g.lin(vHWH0, [(F['b03'], 176), (F['b45'], 8)], sT0)
        o += g.lin(vHR, [(c, 176), (F['b01'], 16)], sBASE)
        o += [salu('s_add_u32', sT0, sBASE, ST01)]
        o += g.lin(vSW, [(c, 64), (F['b01'], 16)], sT0)
        if role == 'A':
            o += [salu('s_lshl_b32', sT0, sw, 7)]
            o += g.lin(vW2V, [(F['b25'], 512), (F['b01'], 16)], sT0)
            o += g.lin(vW2T, [(F['b5'], 512), (F['b23'], 64), (F['b0'], 32), (F['b4'], 16), (F['b1'], 8)], sR2)
            o += [valu('v_add_u32', vR1, WAREA + ST01, vR0), valu('v_add_u32', vR2, WAREA + ST01 + 4 * WSTR, vR0)]
            o += [salu('s_add_u32', sSTG, sR2, 4096 + 127), salu('s_and_b32', sSTG, sSTG, 0xffffff80)]
            o += [valu('v_lshlrev_b32', t, 1, F['b5']), valu('v_xor_b32', t, t, F['b02'])]
            o += g.lin(vOW, [(F['b04'], 128), (t, 16)], sSTG)
            o += g.lin(vP0, [(F['l'], 16)], sSTG)
            o += [valu('v_xor_b32', t, F['b02'], F['b35'])]
            o += g.lin(vP1, [(F['b35'], 512), (t, 16)], sT0)
        o += [salu('s_mov_b32', sC1, 0xbfb8aa3b), salu('s_mov_b32', sC2, 0xbf317218)]
        if role == 'A': o += g.dwbuild(F)
        else: o += [valu('v_add_u32', vW1V2, 16384, vW1V)]
        return o

    def xread(g, buf, j, s, base=0):
        o = (8 + 16 * j + 4 * (s // 4)) * 1040 + 512 * ((s % 4) // 2) + 32 * (s % 2) - base
        return ds_read('ds_read_b128', buf, vXA, o)
    def wtok(g, s, ab): return [g.tW[('B', s, ab)]] if g.role == 'B' else []
    def w32read(g, s, ab):
        sl = g.slot(g.role, s, ab)
        return [ds_read('ds_read_b64_tr_b16', W1F(s, ab)[2 * t:2 * t + 2], vWT32, sl + 256 * t, needs=g.wtok(s, ab)) for t in range(2)]
    def w16read(g, s, ab, ch):
        sl = g.slot(g.role, s, ab)
        return [ds_read('ds_read_b64_tr_b16', W16[ch][2 * t:2 * t + 2], vWT16, sl + 32 * ch + 256 * t,
                        needs=g.wtok(s, ab) + g.wtok(s + 1, ab)) for t in range(2)]
    def xhread(g, n):
        return ds_read('ds_read_b128', XHF, vXH, 2 * (n // 2) * 1040 + 512 * (n % 2))

    def refill(g, s, ab, needs=()):
        ext = g.region('B', s // 2)[0]
        o = [salu('s_mov_b32', sRF, (s // 2) * 32768 + 256)] if (s % 2, ab) == (0, 0) else []
        o.append(g.m0set(sEXT if ext else sBASE, g.slot('B', s, ab) - 512 * ab))
        d = dma(vW1V2 if s % 2 else vW1V, sW1, sRF, 512 * ab, needs=needs); g.tW[('B', s, ab)] = d.tok
        return o + [d]

    def p1(g, role, extra):
        o = []; g.role = role
        lay = g.o['lay' + role]
        def anext(n, rdB):
            s = 2 * n
            wa0, wa1 = g.w32read(s, 0), g.w32read(s + 1, 0)
            lo, hi = g.w16read(s, 0, 0), g.w16read(s, 0, 1)
            g.rdA[n] = [i.tok for i in wa0 + lo + hi + wa1]
            sw_ = []
            if n and g.region(role, n)[0] != g.region(role, n - 1)[0]:
                op = 'v_add_u32' if g.region(role, n)[0] else 'v_subrev_u32'
                sw_ = [valu(op, vWT32, sD, vWT32), valu(op, vWT16, sD, vWT16)]
            return dict(bar=[barrier(rdB, note=f'b{n}')] if role == 'A' else [], sw=sw_, wa0=wa0, wa1=wa1, loa=lo, hia=hi, xh=[g.xhread(n)],
                        f0=[g.xread(FR[0], 0, s)], f1=[g.xread(FR[1], 1, s)], f2=[g.xread(FR[2], 0, s + 1)], f3=[g.xread(FR[3], 1, s + 1)])
        g.rdA = {}
        nx = anext(0, [])
        for k in 'bar f0 wa0 xh loa f1 hia f2 wa1 f3'.split(): o += nx[k]
        for n in range(8):
            s = 2 * n
            c = lambda r: 0 if n == 0 else r
            M = dict(t0a=mfma(32, accA[0], FR[0], W1F(s, 0), c(accA[0])), t1a=mfma(32, accA[1], FR[1], W1F(s, 0), c(accA[1])),
                     hla=mfma(16, accH[0:4], XHF, W16[0], c(accH[0:4])), hha=mfma(16, accH[4:8], XHF, W16[1], c(accH[4:8])),
                     t0A=mfma(32, accA[0], FR[2], W1F(s + 1, 0), accA[0]), t1A=mfma(32, accA[1], FR[3], W1F(s + 1, 0), accA[1]),
                     t0b=mfma(32, accB[0], FR[0], W1F(s, 1), c(accB[0])), t1b=mfma(32, accB[1], FR[1], W1F(s, 1), c(accB[1])),
                     hlb=mfma(16, accH[8:12], XHF, W16[0], c(accH[8:12])), hhb=mfma(16, accH[12:16], XHF, W16[1], c(accH[12:16])),
                     t0B=mfma(32, accB[0], FR[2], W1F(s + 1, 1), accB[0]), t1B=mfma(32, accB[1], FR[3], W1F(s + 1, 1), accB[1]))
            m = [M[k] for k in g.o.morder.split()]
            it = dict(wb0=g.w32read(s, 1), wb1=g.w32read(s + 1, 1), lob=g.w16read(s, 1, 0), hib=g.w16read(s, 1, 1))
            rdB = [i.tok for k in it for i in it[k]]; g.rdB[n] = rdB
            if n < 7: it.update(anext(n + 1, rdB))
            if role == 'B' and n < 5:
                it.update(d0=g.refill(s + 6, 0, g.rdA[n]), d1=g.refill(s + 7, 0), d2=g.refill(s + 6, 1, rdB), d3=g.refill(s + 7, 1))
            fl = []
            for p, names in enumerate(lay.split('|')):
                for k in names.split():
                    if k in it: fl.append((p, it[k]))
                if (n, p) in extra:
                    e = extra[(n, p)]; fl.append((p, e() if callable(e) else e))
            o += interleave(m, fl)
            if g.o.ts is not True: o += g.ts(role, f'blk{n}')
        return o

    def p3(g, w2):
        m, fl = [], []
        bx = lambda s, j: FR[2 * (s % 2) + j]
        pre = [g.xread(bx(0, 0), 2, 0, X2), g.xread(bx(0, 1), 3, 0, X2)]
        for s in range(16):
            c = lambda r: 0 if s == 0 else r
            m += [mfma(32, accA[0], bx(s, 0), W1F(s, 0), c(accA[0])), mfma(32, accB[0], bx(s, 0), W1F(s, 1), c(accB[0])),
                  mfma(32, accB[1], bx(s, 1), W1F(s, 1), c(accB[1])), mfma(32, accA[1], bx(s, 1), W1F(s, 0), c(accA[1]))]
            if s < 15:
                fl.append((4 * s, [g.xread(bx(s + 1, 0), 2, s + 1, X2)]))
                fl.append((4 * s + 2, [g.xread(bx(s + 1, 1), 3, s + 1, X2)]))
        tail = []
        if w2:
            tk = {}
            def ld(k, needs=()):
                ins, tk[k] = g.dmaop(vW2V, sW2, None, (k // 2) * 8192 + (k % 2) * 64, sR2, (k % 8) * 1040, needs=needs)
                return ins
            for k in range(8): fl.append((k, ld(k)))
            ev = []
            for k in range(32):
                i = int(g.o.w2i0 + g.o.w2r * k)
                assert i >= 4 * (k // 2) + 3
                rd = [ds_read('ds_read_b64_tr_b16', W1F(k // 2, k % 2)[2 * t:2 * t + 2], vW2T, (k % 8) * 1040 + 256 * t, needs=[tk[k]]) for t in range(2)]
                ev.append((i, 0, rd))
                if k + 8 < 32: ev.append((i + 2, 1, ld(k + 8, [x.tok for x in rd])))
            ev.sort(key=lambda e: (e[0], e[1]))
            for i, _, ins in ev:
                if i <= 63: fl.append((i, ins))
                else: tail.append(ins)
        return pre, interleave(m, fl), tail

    def act(g, num, src, tmp, first, cst):
        o = []
        n = len(num)
        for i0 in range(0, n, 4):
            r = range(i0, min(i0 + 4, n))
            if first: o += [valu('v_mul_f32', tmp[i], sC1, src[i]) for i in r]
            o += [valu('v_exp_f32', tmp[i], tmp[i] if first else src[i]) for i in r]
            o += [valu('v_fma_f32', tmp[i], tmp[i], cst, cst) for i in r]
            o += [valu('v_rcp_f32', tmp[i], tmp[i]) for i in r]
            o += [valu('v_mul_f32', num[i], num[i], tmp[i]) for i in r]
            o.append(('grp', i0))
        return o
    def splice(g, o, after):
        out = []
        for x in o:
            if isinstance(x, tuple): out += after.get(x[1], [])
            else: out.append(x)
        return out

    def gluH(g):
        a = [accH[i] for i in range(8)]; b = [accH[8 + i] for i in range(8)]
        af = {}
        for ch in range(2):
            d = accH[8 + 2 * ch:10 + 2 * ch]
            af[4 * ch] = [valu('v_cvt_pk_bf16_f32', d[i], a[4 * ch + 2 * i], a[4 * ch + 2 * i + 1]) for i in range(2)] + \
                         [ds_write('ds_write_b64', vHWH, d, 2816 * ch)]
        return g.splice(g.act(a, b, b, True, sC2), af)

    def gluT(g, j):
        a = [accA[j][i] for i in range(16)]; b = [accB[j][i] for i in range(16)]
        af = {}
        for gi in range(4):
            af[4 * gi] = [valu('v_cvt_pk_bf16_f32', b[2 * gi + i], a[4 * gi + 2 * i], a[4 * gi + 2 * i + 1]) for i in range(2)]
            if gi % 2: af[4 * gi].append(ds_write('ds_write_b128', vHW, accB[j][4 * (gi // 2):4 * (gi // 2) + 4], 32 + 64 * j + 16 * (gi // 2)))
        return g.splice(g.act(a, b, b, True, sC2), af)

    def toeplitz(g):
        return [ds_read('ds_read_b128' if n == 4 else 'ds_read_b64', TZ[cg][r:r + n], vTG, 640 * cg + 4 * r)
                for cg in range(2) for r, n in ((0, 4), (4, 4), (8, 2))]

    def convread(g, jp):
        return [ds_read('ds_read_b128', CB[cg][e], vHR, 32 + 2816 * cg + (4 * jp + e) * 16) for e in range(3) for cg in range(2)]
    def conv(g):
        o = []
        for s in range(5):
            for cg in range(2):
                for q in range(2):
                    gi = q + s; d = accH[8 * cg + 4 * q:8 * cg + 4 * q + 4]
                    o.append(mfma(4, d, TZ[cg][2 * s:2 * s + 2], CB[cg][gi // 2][2 * (gi % 2):2 * (gi % 2) + 2], 0 if s == 0 else d))
        if g.o.prioC != g.o.prioV: o = [prio(g.o.prioC)] + o + [prio(g.o.prioV)]
        return o
    def carry(g):
        return [ds_write('ds_write_b128', vHR, CB[cg][2], 2816 * cg) for cg in range(2)]
    def silu(g, imm):
        x = [accH[i] for i in range(16)]; t = [TMP[i % 8] for i in range(16)]
        af = {}
        for gi in range(4):
            cg = gi // 2
            af[4 * gi] = [valu('v_cvt_pk_bf16_f32', x[8 * cg + 2 * (gi % 2) + i], x[4 * gi + 2 * i], x[4 * gi + 2 * i + 1]) for i in range(2)]
            if gi % 2: af[4 * gi].append(ds_write('ds_write_b128', vSW, accH[8 * cg:8 * cg + 4], imm + 1024 * cg))
        return g.splice(g.act(x, x, t, False, sC1), af)

    def v1(g, role):
        o = [prio(g.o.prioV), valu('v_mov_b32', vTG, vTG0), valu('v_mov_b32', vHWH, vHWH0)]
        if role == 'A': o += [valu('v_mov_b32', vOR, vP0), valu('v_mov_b32', vOV, vP1)]
        ft = lambda n: g.ts(role, 'f' + n) if g.o.ts is not True else []
        o += sprinkle(g.gluH() + g.gluT(0), g.toeplitz())
        o += ft('1')
        o += g.convread(0)
        o += ft('2')
        o += g.gluT(1)
        o += g.ts(role, 'glu')
        o += g.conv() + g.convread(1)
        o += ft('3')
        o += g.silu(0)
        o += ft('4')
        o += g.conv() + g.carry()
        o += ft('5')
        o += g.silu(2048)
        return o

    def sread(g, j, s):
        w, cg = s // 2, s % 2
        if j < 2: base, o = (vR1, WSTR * w + 2048 * j) if w < 4 else (vR2, WSTR * (w - 4) + 2048 * j)
        elif w < 4: base, o = vR0, R2STR * w + 2048 * (j - 2)
        elif j == 2: base, o = vR0, R2STR * (w - 4) + 8320
        else: base, o = vR0, X2 + 2048 * (w - 4)
        return [ds_read('ds_read_b64_tr_b16', FR[s % 4][2 * t:2 * t + 2], base, o + 1024 * cg + 256 * t) for t in range(2)]
    def g2acc(g, j): return [V(48, 16), V(64, 16)] if j % 2 == 0 else [V(16, 16), V(32, 16)]
    def g2(g, j, side=(), s0=2):
        acc = g.g2acc(j)
        pre = g.sread(j, 0) + g.sread(j, 1)
        m, fl = [], []
        for s in range(16):
            for mt in range(2): m.append(mfma(32, acc[mt], W1F(s, mt), FR[s % 4], 0 if s == 0 else acc[mt]))
            if s + 2 < 16: fl.append((2 * s, g.sread(j, s + 2)))
        for k, grp in enumerate(side): fl.append((s0 + k, grp))
        return pre, interleave(m, fl)
    def epilogue(g, j):
        acc = g.g2acc(j); RB = V(0, 16); gr = []
        tmp = V(96 + 0)
        for mt in range(2):
            for e in range(2):
                x = [valu('v_cvt_pk_bf16_f32', acc[mt][4 * e + i], acc[mt][8 * e + 2 * i], acc[mt][8 * e + 2 * i + 1]) for i in range(4)]
                k = 4 * mt + e
                if k:
                    x.append(valu('v_xor_b32', g.vOT, 16 * k, vOW)); ad = g.vOT
                else: ad = vOW
                x.append(ds_write('ds_write_b128', ad, acc[mt][4 * e:4 * e + 4], 0))
                gr.append(x)
        for p in range(4): gr.append([ds_read('ds_read_b128', RB[4 * p:4 * p + 4], vOR, 1024 * p)])
        gr.append([]); gr.append([])
        for p in range(4):
            gr.append([salu('s_mov_b32', sSO, (32 * j + 8 * p) * 512),
                       vstore('buffer_store_dwordx4', RB[4 * p:4 * p + 4], vOV, sOUT, sSO, flags=g.o.stflags)])
        return gr

    def flt(g, ins, role):
        drop = (g.o.get('d' + role) or '').split(',')
        return [i for i in ins if i.kind not in drop and not ('mf4' in drop and '4x4x4' in i.text) and not ('m16' in drop and '16x16' in i.text)
                and not ('w16' in drop and i.kind == 'dsr' and (('v', 100) in i.wr or ('v', 102) in i.wr or ('v', 104) in i.wr or ('v', 106) in i.wr))]

    def streamA(g):
        o = []
        o += [salu('s_lshr_b32', sT0, S(2), 3), salu('s_and_b32', sT0, sT0, 31), salu('s_lshl_b32', sT0, sT0, 2), salu('s_add_u32', sT0, sT0, sU),
              salu('s_lshl_b32', sT1, sT0, 11), salu('s_lshl_b32', sT0, sT0, 10),
              valu('v_and_b32', V(8), 63, V(0)), valu('v_lshlrev_b32', V(9), 5, V(8)), valu('v_lshlrev_b32', V(8), 4, V(8)),
              vload('buffer_load_dword', V(30), V(9), sW1, sT1), vload('buffer_load_dword', V(31), V(8), sW2, sT0)]
        o += g.dwload()
        o += g.ts('A', 'iss0')
        o += g.addrs('A')
        o += g.ts('A', 'pro')
        o.append(prio(g.o.prioA1))
        o += g.p1('A', {})
        o += g.ts('A', 'p1')
        o += g.flt(g.v1('A'), 'A')
        o += [valu('v_add_u32', vXA, X2, vXA)]
        o += g.ts('A', 'v1')
        o.append(barrier(drain_lgkm=True, note='bar5'))
        o.append(prio(g.o.prioM))
        o += g.ts('A', 'b5')
        pre, m, tail = g.p3(True)
        o += pre + m
        o += g.ts('A', 'p3')
        o += [prio(g.o.prioV), salu('s_sub_u32', sT0, sR2, sBASE), salu('s_sub_u32', sT0, sT0, ST01), valu('v_add_u32', vSW, sT0, vSW)]
        if g.o.b6 == 'p3': o.append(barrier(note='bar6'))
        o += sprinkle(g.gluT(0), tail, per=1)
        if g.o.b6 != 'p3': o.append(barrier(note='bar6'))
        o += g.ts('A', 'b6')
        o += g.convread(0)
        o += g.gluT(1)
        o += g.conv() + g.convread(1)
        o += g.silu(0)
        o += g.conv()
        o += g.silu(2048)
        g.vOT = V(96)
        o.append(prio(g.o.prioM))
        o += g.ts('A', 'v2')
        side = []
        for j in range(4):
            if j >= 2: o.append(barrier(drain_lgkm=(j == 2), note=f'bar{5+j}'))
            pre, m = g.g2(j, side)
            o += pre + m
            side = g.epilogue(j)
            if j in (1, 2): o += g.ts('A', f'g{j}')
        for grp in side: o += grp
        for k in range(g.o.padm or 0): o.append(mfma(32, V(16 * (1 + k % 2), 16), A(0, 4), A(4, 4), 0))
        o += g.ts('A', 'end')
        return o + g.fin('A')

    def streamB(g):
        g.tW = {}; g.rdB = {}
        o = []
        def xq(q):
            r = []; tk = []
            for gr in range(2):
                ins, t = g.dmaop(g.vXV, sX, sXS, 8 * 512 + 4096 * gr + 128 * q, sXL, (8 + 4 * q + gr) * 1040, flags=g.o.xflags)
                r += ins; tk.append(t)
            return r, tk
        def xh(k):
            ins, t = g.dmaop(V(7), sX, None, 256 * k, sHL, 4160 * k, flags=g.o.xflags)
            return ins, [t]
        tk = {}
        def item(name):
            if name[0] == 'q': r = xq(int(name[1]))
            elif name[0] == 'h': r = xh(int(name[1]))
            elif name[0] == 'w': r = g.wblk('A', int(name[1]))
            elif name[0] == 'o': r = g.wblk('B', int(name[1]))
            elif name[0] == 'x':
                if name == 'x0': g.x2i, g.x2t = g.x2load(0)
                k = int(name[1]); r = g.x2i[k], [g.x2t[k]]
            tk[name] = r[1]
            return r[0]
        orders = {
            'a': 'q0 h0 w0 q1 w1|w2 q2 h1 w3|w4 q3|w5|w6|w7|o0|o1 o2',
            'b': 'q0 h0 w0 q1 w1|q2 w2 h1 w3|q3 w4|w5|w6|w7|o0|o1 o2',
            'c': 'q0 h0 w0 w1 q1|w2 q2 h1 w3|w4 q3|w5|w6|w7|o0|o1 o2',
            'd': 'q0 h0 w0 q1 w1|w2 q2 h1 w3|w4 q3|w5|w6|w7|o0|o1 x0 x1 x2 x3 o2',
        }
        groups = [x.split() for x in orders.get(g.o.order, g.o.order).split('|')]
        need = {0: 'q0 h0 w0', 1: 'w1', 2: 'q1 w2', 3: 'w3', 4: 'q2 h1 w4', 5: 'w5', 6: 'q3 w6', 7: 'w7'}
        o += item(groups[0][0])
        o += [salu('s_and_b32', sT0, sU, 1), salu('s_lshl_b32', sT0, sT0, 12), salu('s_lshr_b32', sT1, sU, 1), salu('s_lshl_b32', sT1, sT1, 7),
              salu('s_add_u32', sT0, sT0, sT1), salu('s_add_u32', sT0, sT0, sROW), salu('s_sub_u32', sT0, sT0, 4096),
              valu('v_add_u32', V(7), sT0, g.vXV), salu('s_mul_i32', sHL, sU, 1040)]
        o += item(groups[0][1])
        o += [salu('s_mul_i32', sAE, sU, 8320), salu('s_add_u32', sAE, sAE, X2), salu('s_sub_u32', sAO, sBASE, 4 * WSTR),
              salu('s_mul_i32', sEXT, sU, 4160), salu('s_add_u32', sEXT, sEXT, X2 + 16640)]
        o += g.w1v()
        o += g.ts('B', 'iss0')
        for nm in groups[0][2:]: o += item(nm)
        o += g.ts('B', 'iss1')
        o += [valu('v_mov_b32', vXV2, g.vXV)]
        o += g.addrs('B')
        o += [salu('s_lshl_b32', sXS, sU, 7), salu('s_add_u32', sXS, sXS, sROW)] if not any(n[0] == 'q' for gp in groups[1:] for n in gp) else []
        o += g.ts('B', 'pro')
        lastq = max(i for i, gp in enumerate(groups) if any(n[0] == 'q' for n in gp))
        for n in range(8):
            if n:
                for nm in groups[n]: o += item(nm)
                if n == lastq: o += [salu('s_lshl_b32', sXS, sU, 7), salu('s_add_u32', sXS, sXS, sROW)]
            o += [waitfor([t for nm in need[n].split() for t in tk[nm]])] + g.ts('B', f'xl{n}') + [barrier(note=f'b{n}')]
        o += g.ts('B', 'b7')
        o.append(prio(g.o.prioB1))
        extra = {}
        def add(pos, f):
            old = extra.get(pos)
            extra[pos] = f if old is None else (lambda a=old, b=f: a() + b())
        if 'x0' not in tk:
            g.x2i, g.x2t = g.x2load(0)
            for k, n in enumerate(g.o.t2pos):
                add(n if isinstance(n, tuple) else (n, 4), lambda k=k: g.x2i[k])
        x2t = list(g.x2t)
        def t3(k):
            if k == 0: g.x3i, g.x3t = g.x2load(1, g.rdB[5]); x2t.extend(g.x3t)
            return g.x3i[k]
        for k, pos in enumerate(g.o.t3pos): add(pos, lambda k=k: t3(k))
        o += g.flt(g.p1('B', extra), 'B')
        o += g.ts('B', 'p1')
        o.append(barrier(x2t, drain_lgkm=True, note='bar5'))
        o += g.ts('B', 'b5')
        o += g.v1('B')
        o += [valu('v_add_u32', vXA, X2, vXA)]
        o += g.ts('B', 'v1')
        o.append(barrier(drain_lgkm=True, note='bar6'))
        o.append(prio(g.o.prioM))
        o += g.ts('B', 'b6')
        pre, m, _ = g.p3(False)
        o += pre + m
        o += g.ts('B', 'p3')
        o += [prio(g.o.prioV), salu('s_sub_u32', sT0, sR2, sBASE), salu('s_add_u32', sT0, sT0, 8320 - ST01), valu('v_add_u32', vSW, sT0, vSW)]
        o += g.gluT(0)
        o += g.convread(0)
        o += g.gluT(1)
        o += g.conv() + g.convread(1)
        o += g.silu(0)
        o.append(barrier(drain_lgkm=True, note='bar7'))
        o += g.ts('B', 'b7')
        o += [salu('s_mul_i32', sT0, sU, 2048 - R2STR), salu('s_add_u32', sT0, sT0, X2 - 8320), valu('v_add_u32', vSW, sT0, vSW)]
        o += g.conv()
        o += g.silu(0)
        o.append(barrier(drain_lgkm=True, note='bar8'))
        o += g.ts('B', 'end')
        return o + g.fin('B')

    def fin(g, role):
        o = []
        if g.o.ts:
            t = Tok()
            o.append(I('wait', 's_waitcnt vmcnt(0) lgkmcnt(0)'))
            o += [I('smem', f's_memrealtime {S(92, 2)}', wr=S(92, 2).regs(), tok=t), waitfor([t])]
            o.append(valu('v_mov_b32', V(1), 0))
            for n in range(1, len(g.nts[role]) + 1):
                o += [salu('s_sub_u32', sT0, S(sTS + 2 * n), S(sTS)), raw(f'v_writelane_b32 v1, {sT0}, {n-1}', 'valu', rd=sT0.regs(), wr=[('v', 1)])]
            o += [raw(f'v_writelane_b32 v1, s90, {NTS-2}', 'valu', wr=[('v', 1)]), raw(f'v_writelane_b32 v1, s92, {NTS-1}', 'valu', wr=[('v', 1)])]
            o += [salu('s_lshl_b32', sT0, S(2), 3), salu('s_add_u32', sT0, sT0, sw), salu('s_mul_i32', sT0, sT0, NTS * 4),
                  valu('v_and_b32', V(2), 63, V(1)), raw('v_mbcnt_lo_u32_b32 v2, -1, 0', 'valu', wr=[('v', 2)]),
                  raw('v_mbcnt_hi_u32_b32 v2, -1, v2', 'valu', rd=[('v', 2)], wr=[('v', 2)]),
                  valu('v_lshlrev_b32', V(2), 2, V(2)), raw(f's_mov_b64 exec, {hex((1 << NTS) - 1)}'), raw('s_nop 4'),
                  vstore('buffer_store_dword', V(1), V(2), sWS, sT0)]
        if g.o.spin:
            o += [I('wait', 's_waitcnt vmcnt(0) lgkmcnt(0)'), raw(f'L_SPIN{role}:'), raw('s_memrealtime s[92:93]'), raw('s_waitcnt lgkmcnt(0)'),
                  raw('s_sub_u32 s94, s92, s90'), raw(f's_cmp_lt_u32 s94, {g.o.spin}'), raw(f's_cbranch_scc1 L_SPIN{role}')]
        if g.o.dbg:
            t = Tok(); t2 = Tok()
            o.append(I('wait', 's_waitcnt vmcnt(0)'))
            o += [I('smem', f's_memrealtime {S(92, 2)}', wr=S(92, 2).regs(), tok=t), I('smem', f's_memtime {S(46, 2)}', wr=S(46, 2).regs(), tok=t2),
                  I('mark', '', drain_lgkm=True)]
            o += [salu('s_sub_u32', S(46), S(46), S(44)), salu('s_sub_u32', S(47), S(92), S(90)), salu('s_sub_u32', S(90), 0, S(90)),
                  valu('v_mov_b32', V(1), 0)]
            for n, r in enumerate((90, 92, 46, 47)):
                o.append(raw(f'v_writelane_b32 v1, s{r}, {n}', 'valu', rd=[('s', r)], wr=[('v', 1)]))
            o += [raw('v_mbcnt_lo_u32_b32 v2, -1, 0', 'valu', wr=[('v', 2)]),
                  raw('v_mbcnt_hi_u32_b32 v2, -1, v2', 'valu', rd=[('v', 2)], wr=[('v', 2)]),
                  valu('v_lshlrev_b32', V(2), 2, V(2)), raw('s_mov_b64 exec, 15'), raw('s_nop 4'),
                  raw('buffer_atomic_umax v1, v2, s[24:27], 0 offen')]
        o.append(raw('s_endpgm'))
        return o

    def build(g):
        c = g.common()
        a, b = g.streamA(), g.streamB()
        nb = lambda x: sum(i.kind == 'bar' for i in x)
        assert nb(a) == nb(b), (nb(a), nb(b))
        fa, fb = finalize(c + a), finalize(c + b)
        n = len(finalize(c))
        assert [i.text for i in fa[:n]] == [i.text for i in fb[:n]]
        hdr = open('standalone__conformer_conv_module__speech.s.ref').read().split('; Override launch')[0]
        t = hdr + '; @launch grid=(250,1,1) block=(512,1,1) lds=163840\n'
        t += f'.amdgcn_target "amdgcn-amd-amdhsa--gfx950"\n.text\n.globl {K}\n.p2align 8\n.type {K},@function\n{K}:\n'
        t += text(fb) + 'L_A:\n' + text(fa[n:]) + 'L_END:\n    s_endpgm\n'
        t += f'''.section .rodata,"a"
.p2align 6
.amdhsa_kernel {K}
  .amdhsa_next_free_vgpr 256
  .amdhsa_next_free_sgpr 102
  .amdhsa_accum_offset 128
  .amdhsa_group_segment_fixed_size 0
  .amdhsa_kernarg_size 56
  .amdhsa_user_sgpr_count 2
  .amdhsa_user_sgpr_kernarg_segment_ptr 1
  .amdhsa_system_sgpr_workgroup_id_x 1
.end_amdhsa_kernel
'''
        g.fa, g.fb = fa, fb
        return t

def parse_opts(args):
    kw = {}
    for a in args:
        k, v = a.split('=', 1)
        try: v = ast.literal_eval(v)
        except Exception: pass
        kw[k] = v
    return kw

if __name__ == '__main__':
    out = sys.argv[1]
    g = Gen(**parse_opts(sys.argv[2:]))
    t = g.build(); open(out, 'w').write(t)
    from collections import Counter
    for nm, f in (('A', g.fa), ('B', g.fb)):
        c = Counter(i.kind for i in f)
        print(nm, len(f), dict(c), g.nts.get(nm))
        print('   est', ' '.join(f'{n}:{t}' for n, t in estimate(f)))
```
